```python
import torch

def _softmax(x, axis=-1):
    return torch.softmax(x, dim=axis)
def _gelu(x):
    return torch.nn.functional.gelu(x, approximate="tanh")
def _silu(x):
    return torch.nn.functional.silu(x)
def _sigmoid(x):
    return torch.sigmoid(x)
def _layernorm(x, axis=-1, eps=1e-5):
    m = x.mean(dim=axis, keepdim=True)
    v = x.var(dim=axis, keepdim=True, unbiased=False)
    return (x - m) / torch.sqrt(v + eps)
def _scatter_add(tgt, idx, src, axis=0):
    return tgt.clone().index_add_(axis, idx, src)
def _segment_sum(src, seg, n):
    out = torch.zeros((n,) + src.shape[1:], dtype=src.dtype)
    return out.index_add_(0, seg, src)
def _pad(x, pw):
    flat = tuple(v for pair in reversed(pw) for v in pair)
    return torch.nn.functional.pad(x, flat)

kernel_name = 'concat_heads__ssm_conv_h3__sliding_block__prompt'

def setup_inputs():

    _w = (lambda a: (lambda t: t.to(torch.bfloat16) if t.is_floating_point() else t)(torch.as_tensor(a)))
    def _A_setup():
        B, S, D = 1, 2048, 640
        ks = 4
        return {
            "q": _w((lambda *s: torch.randn(*s, dtype=torch.bfloat16) * 0.05)(B, S, D)),
            "k": _w((lambda *s: torch.randn(*s, dtype=torch.bfloat16) * 0.8)(B, S, D)),
            "v": _w((lambda *s: torch.randn(*s, dtype=torch.bfloat16) * 0.8)(B, S, D)),
            "shift_k": _w((lambda *s: torch.randn(*s, dtype=torch.bfloat16) * 0.8)(D, ks) * 0.5),
            "ssm_k": _w((lambda *s: torch.randn(*s, dtype=torch.bfloat16) * 3.2)(D, S) * (1.0 / S ** 0.5)),
            "ssm_D": _w((lambda *s: torch.randn(*s, dtype=torch.bfloat16) * 0.8)(D)),
        }
    _A_in = _A_setup()

    def _B_setup():
        B, S, D = 1, 2048, 640
        return {
            "x": _w((lambda *s: torch.randn(*s, dtype=torch.bfloat16) * 0.2)(B, S, D)),
            "wqkv": _w((lambda *s: torch.randn(*s, dtype=torch.bfloat16) * 0.2)(D, 3 * D)),
            "wo": _w((lambda *s: torch.randn(*s, dtype=torch.bfloat16) * 0.05)(D, D)),
        }
    _B_in = _B_setup()

    return {
        "A_q": _A_in["q"],
        "A_k": _A_in["k"],
        "A_v": _A_in["v"],
        "A_shift_k": _A_in["shift_k"],
        "A_ssm_k": _A_in["ssm_k"],
        "A_ssm_D": _A_in["ssm_D"],
        "B_x": _B_in["x"],
        "B_wqkv": _B_in["wqkv"],
        "B_wo": _B_in["wo"],
    }

def reference(A_q, A_k, A_v, A_shift_k, A_ssm_k, A_ssm_D, B_x, B_wqkv, B_wo):
    def _A_ref(q, k, v, shift_k, ssm_k, ssm_D):
        B, S, D = q.shape
        ks = shift_k.shape[-1]
        k_pad = _pad(k, ((0, 0), (ks - 1, 0), (0, 0)))
        k_shift = torch.zeros_like(k)
        for t in range(ks):
            k_shift = k_shift + k_pad[:, t:t + S, :] * shift_k[:, ks - 1 - t][None, None, :]
        kv = k_shift * v
        L = 2 * S
        kv_pad = _pad(kv, ((0, 0), (0, S), (0, 0)))
        kf_pad = _pad(ssm_k, ((0, 0), (0, S)))
        kv_f = (lambda x, axes=(-2,-1): torch.fft.rfft2(x.float(), dim=axes))(kv_pad[:, None, :, :], axes=(1, 2))
        kf_f = (lambda x, axes=(-2,-1): torch.fft.rfft2(x.float(), dim=axes))(kf_pad[:, None, :], axes=(1, 2))
        kf_f = (lambda x, *d: x.permute(*d))(kf_f, 1, 2, 0)
        y_f = kv_f * kf_f[None, :, :, :]
        y = (lambda x, s, axes=(-2,-1): torch.fft.irfft2(x, s=s, dim=axes).to(torch.bfloat16))(y_f, (1, L), axes=(1, 2))[:, 0, :S, :]
        y = y + kv * ssm_D[None, None, :]
        return q * y

    def _B_ref(x, wqkv, wo):
        B, S, D = x.shape
        H = 32; Dh = D // H; W = 256
        qkv = (lambda x, *d: x.permute(*d))((x @ wqkv).reshape(B, S, 3, H, Dh), 2, 0, 3, 1, 4)
        q, k, v = qkv[0], qkv[1], qkv[2]
        scores = torch.einsum("bhqd,bhkd->bhqk", q, k) * (Dh ** -0.5)
        idx = torch.arange(S)
        mask = (idx[:, None] - idx[None, :] >= 0) & (idx[:, None] - idx[None, :] < W)
        scores = torch.where(mask[None, None], scores, -1e9)
        p = _softmax(scores, axis=-1)
        o = torch.einsum("bhqk,bhkd->bhqd", p, v)
        return (lambda x, *d: x.permute(*d))(o, 0, 2, 1, 3).reshape(B, S, D) @ wo

    a = _A_ref(A_q, A_k, A_v, A_shift_k, A_ssm_k, A_ssm_D)
    b = _B_ref(B_x, B_wqkv, B_wo)
    return torch.concatenate([a, b], axis=-1)
```

```python
import re

TRANS = ("v_exp_f32", "v_log_f32", "v_rcp_f32", "v_rsq_f32", "v_sqrt_f32", "v_sin_f32", "v_cos_f32")


def _regs(tok):
    tok = tok.strip()
    tok = tok.lstrip("-")
    m = re.match(r"abs\((.*)\)$", tok)
    if m:
        tok = m.group(1)
    m = re.match(r"([vsa])\[(\d+):(\d+)\]$", tok)
    if m:
        return [(m.group(1), i) for i in range(int(m.group(2)), int(m.group(3)) + 1)]
    m = re.match(r"([vsa])(\d+)$", tok)
    if m:
        return [(m.group(1), int(m.group(2)))]
    if tok == "vcc":
        return [("s", 106), ("s", 107)]
    if tok == "vcc_lo":
        return [("s", 106)]
    if tok == "vcc_hi":
        return [("s", 107)]
    if tok == "exec":
        return [("s", 126), ("s", 127)]
    if tok == "m0":
        return [("s", 124)]
    return []


class Inst:
    def __init__(self, text):
        self.text = text
        t = text.split(";")[0].strip()
        self.label = t.endswith(":")
        self.defs, self.uses = set(), set()
        self.srcc = set()
        self.srcab = set()
        self.kind = "other"
        self.passes = 0
        self.nop = 0
        if self.label or not t or t.startswith("."):
            self.kind = "meta"
            self.op = ""
            return
        parts = t.split(None, 1)
        op = parts[0]
        self.op = op
        rest = parts[1] if len(parts) > 1 else ""
        ops = [o.strip() for o in rest.split(",")] if rest else []
        ops2 = []
        for o in ops:
            ops2.append(o.split()[0] if o else o)
        mods = rest
        R = [_regs(o) for o in ops2]
        if op == "s_nop":
            self.kind = "nop"
            self.nop = int(ops2[0], 0) + 1
        elif op.startswith("v_mfma"):
            self.kind = "mfma"
            self.passes = 8 if "32x32" in op else 4
            self.defs = set(R[0])
            self.srcab = set(R[1]) | set(R[2])
            self.srcc = set(R[3])
            self.uses = self.srcab | self.srcc
        elif op.startswith("v_"):
            self.kind = "valu"
            if op.startswith("v_cmp"):
                self.defs = set(R[0])
                for r in R[1:]:
                    self.uses |= set(r)
            elif op.startswith("v_permlane") and "swap" in op:
                self.defs = set(R[0]) | set(R[1])
                self.uses = set(R[0]) | set(R[1])
            elif op in ("v_add_co_u32", "v_sub_co_u32", "v_addc_co_u32", "v_subb_co_u32"):
                self.defs = set(R[0]) | set(R[1])
                for r in R[2:]:
                    self.uses |= set(r)
            else:
                self.defs = set(R[0])
                for r in R[1:]:
                    self.uses |= set(r)
                if op.startswith("v_fmac") or op.startswith("v_mac") or op.startswith("v_writelane"):
                    self.uses |= set(R[0])
                if op.startswith("v_cndmask") and len(R) < 4:
                    self.uses |= {("s", 106), ("s", 107)}
        elif op.startswith("ds_"):
            self.kind = "ds"
            if op.startswith("ds_read") or op.startswith("ds_bpermute") or op.startswith("ds_permute") or op.startswith("ds_swizzle"):
                self.defs = set(R[0])
                for r in R[1:]:
                    self.uses |= set(r)
            else:
                for r in R:
                    self.uses |= set(r)
        elif op.startswith("buffer_") or op.startswith("global_"):
            self.kind = "vmem"
            islds = re.search(r"\blds\b", mods) is not None or "_lds_" in op
            self.lds = islds
            if "load" in op and not islds:
                self.defs = set(R[0])
                for r in R[1:]:
                    self.uses |= set(r)
            else:
                for r in R:
                    self.uses |= set(r)
                if islds:
                    self.uses |= {("s", 124)}
            self.wide_store = ("store" in op) and ("x4" in op or "x3" in op)
            self.store_data = set(R[0]) if ("store" in op and op.startswith("buffer_")) else (set(R[1]) if "store" in op else set())
        elif op.startswith("s_"):
            self.kind = "salu"
            if op.startswith("s_cmp") or op.startswith("s_cbranch") or op in ("s_branch", "s_barrier", "s_waitcnt", "s_endpgm", "s_setprio", "s_sleep"):
                for r in R:
                    self.uses |= set(r)
            else:
                if R:
                    self.defs = set(R[0])
                for r in R[1:]:
                    self.uses |= set(r)
                if "saveexec" in op:
                    self.defs |= {("s", 126), ("s", 127)}
        self.trans = op in TRANS


def required_gap(p, c):
    need = 0
    vdefs = {r for r in p.defs if r[0] in "va"}
    sdefs = {r for r in p.defs if r[0] == "s"}
    if p.kind == "valu":
        if c.kind == "mfma" and vdefs & c.uses:
            need = max(need, 2)
        if sdefs:
            if c.kind == "vmem" and sdefs & c.uses:
                need = max(need, 5)
            if c.kind in ("valu", "mfma") and sdefs & c.uses:
                need = max(need, 4 if c.op.startswith(("v_readlane", "v_writelane")) else 2)
            if c.kind == "salu" and sdefs & c.uses:
                need = max(need, 2)
        if c.kind == "valu" and c.op.startswith(("v_readfirstlane", "v_readlane")) and vdefs & c.uses:
            need = max(need, 1)
        if p.trans and c.kind == "valu" and not c.trans and vdefs & c.uses:
            need = max(need, 1)
        if c.kind == "valu" and (c.op.startswith("v_permlane") or "dpp" in c.text or "row_" in c.text or "quad_perm" in c.text) and vdefs & c.uses:
            need = max(need, 2)
    if p.kind == "mfma":
        big = 12 if p.passes == 8 else 8
        if c.kind == "mfma":
            if vdefs & c.srcab:
                need = max(need, big)
            if vdefs & c.srcc:
                if not (c.srcc == vdefs and c.passes == p.passes):
                    need = max(need, 10 if p.passes == 8 else 6)
            if (vdefs & c.defs) and not (vdefs & c.srcc):
                need = max(need, big)
        elif c.kind in ("valu", "vmem", "ds"):
            if vdefs & (c.uses | c.defs):
                need = max(need, big)
            if c.kind == "valu" and (p.srcc & c.defs):
                need = max(need, 7 if p.passes == 8 else 3)
    if p.kind == "salu" and ("s", 124) in p.defs:
        if c.kind == "vmem" and getattr(c, "lds", False):
            need = max(need, 1)
    if p.kind == "vmem" and getattr(p, "wide_store", False):
        if c.kind in ("valu", "mfma", "vmem", "ds") and (p.store_data & c.defs):
            need = max(need, 2)
    return need


class Asm:
    def __init__(self):
        self.lines = []

    def __call__(self, text):
        for l in text.split("\n"):
            l = l.rstrip()
            if l.strip():
                self.lines.append(l)

    def label(self, name):
        self.lines.append(name + ":")

    def finalize(self, window=24):
        insts = [Inst(l) for l in self.lines]
        out = []

        def dist_states(seq, i_from):
            n = 0
            for k in range(i_from + 1, len(seq)):
                x = seq[k]
                if x.kind == "meta":
                    continue
                n += x.nop if x.kind == "nop" else 1
            return n

        for c in insts:
            if c.kind in ("meta", "nop"):
                out.append(c)
                continue
            need_extra = 0
            n = 0
            for k in range(len(out) - 1, -1, -1):
                p = out[k]
                if p.kind == "meta":
                    continue
                g = required_gap(p, c)
                if g > n:
                    need_extra = max(need_extra, g - n)
                n += p.nop if p.kind == "nop" else 1
                if n > window:
                    break
            while need_extra > 0:
                t = min(need_extra, 16)
                out.append(Inst("    s_nop %d" % (t - 1)))
                need_extra -= t
            out.append(c)
        labels = {x.text.split(":")[0].strip(): i for i, x in enumerate(out) if x.label}
        problems = []
        for i, x in enumerate(out):
            if x.kind == "salu" and (x.op.startswith("s_cbranch") or x.op == "s_branch"):
                tgt = x.text.split(";")[0].split()[-1]
                if tgt not in labels:
                    continue
                j = labels[tgt]
                pre = [y for y in out[max(0, i - window):i + 1] if y.kind != "meta"]
                post = [y for y in out[j:j + window] if y.kind != "meta"]
                for b, c in enumerate(post):
                    if c.kind == "nop":
                        continue
                    n = sum((y.nop if y.kind == "nop" else 1) for y in post[:b])
                    for a in range(len(pre) - 1, -1, -1):
                        p = pre[a]
                        g = required_gap(p, c)
                        if g > n:
                            problems.append((p.text, c.text, g, n))
                        n += p.nop if p.kind == "nop" else 1
        for pr in problems:
            print("HAZARD across branch:", pr)
        if problems:
            raise SystemExit("fix branch hazards")
        return "\n".join(x.text for x in out) + "\n"
```

```python
from asmlib import Asm

QH, KH, VT, OO, XR0, XR1, ZT = 0x0, 0x280000, 0x500000, 0x780000, 0xA00000, 0xC80000, 0xF00000
REG = 0x280000
NST = 10
NSLOT = 5


def srd(a, d, lo, hi, size, add=0):
    if add:
        a(f"    s_add_u32 s{d}, s{lo}, 0x{add:x}")
        a(f"    s_addc_u32 s{d+1}, s{hi}, 0")
    else:
        a(f"    s_mov_b32 s{d}, s{lo}")
        a(f"    s_mov_b32 s{d+1}, s{hi}")
    a(f"    s_mov_b32 s{d+2}, 0x{size:x}")
    a(f"    s_mov_b32 s{d+3}, 0x20000")


class VQ:
    def __init__(self, a):
        self.a = a
        self.q = []

    def issue(self, tag, text):
        self.a(text)
        self.q.append(tag)

    def wait(self, tag):
        idx = max((i for i, t in enumerate(self.q) if t == tag), default=-1)
        if idx < 0:
            return
        n = len(self.q) - 1 - idx
        self.a(f"    s_waitcnt vmcnt({min(n, 63)})")
        if n <= 63:
            self.q = self.q[idx + 1:]


def gen_k1(a):
    a("""
.globl k1_kernel
.p2align 8
.type k1_kernel,@function
k1_kernel:
    s_cmp_ge_u32 s2, 240
    s_cbranch_scc1 K1_END
    s_load_dwordx2 s[4:5], s[0:1], 48
    s_load_dwordx2 s[6:7], s[0:1], 56
    s_load_dwordx2 s[8:9], s[0:1], 88
    s_load_dwordx2 s[10:11], s[0:1], 8
    s_load_dwordx2 s[12:13], s[0:1], 16
    s_load_dwordx2 s[14:15], s[0:1], 24
    v_lshrrev_b32 v1, 6, v0
    v_and_b32 v0, 63, v0
    v_readfirstlane_b32 s3, v1
    s_and_b32 s16, s2, 7
    s_mul_i32 s16, s16, 30
    s_lshr_b32 s17, s2, 3
    s_add_u32 s16, s16, s17          ; L
    s_mul_i32 s17, s16, 1093
    s_lshr_b32 s17, s17, 16          ; sgroup
    s_mul_i32 s18, s17, 60
    s_sub_u32 s18, s16, s18          ; rem
    s_lshl_b32 s17, s17, 2
    s_and_b32 s16, s18, 3
    s_add_u32 s16, s16, s17          ; mt
    s_lshr_b32 s17, s18, 2           ; nt
    s_waitcnt lgkmcnt(0)
    s_cmp_ge_u32 s3, 4
    s_cbranch_scc1 K1_HELPER
""")
    a("""
    s_lshr_b32 s18, s3, 1
    s_and_b32 s19, s3, 1
    v_and_b32 v1, 31, v0             ; l&31
    v_lshrrev_b32 v2, 5, v0          ; kh
    v_lshrrev_b32 v3, 1, v1
    v_and_b32 v3, 7, v3              ; f
    v_xor_b32 v3, v3, v2             ; kh ^ f
    v_lshlrev_b32 v3, 4, v3
    s_lshl_b32 s20, s18, 6
    v_add_u32 v4, s20, v1
    v_lshlrev_b32 v4, 7, v4          ; row*128
    v_add_u32 v4, v4, v3
    v_xor_b32 v5, 32, v4
    v_xor_b32 v6, 64, v4
    v_xor_b32 v7, 0x60, v4
    ; W addresses
    v_lshrrev_b32 v8, 4, v0          ; g
    v_lshrrev_b32 v9, 2, v0
    v_and_b32 v9, 3, v9              ; r
    v_and_b32 v10, 3, v0             ; c
    v_lshrrev_b32 v11, 1, v8
    v_lshlrev_b32 v11, 3, v11
    v_add_u32 v11, v11, v9           ; k_local
    v_lshlrev_b32 v11, 8, v11
    v_and_b32 v12, 1, v8
    v_lshlrev_b32 v12, 5, v12        ; 16*(g&1)*2
    v_lshlrev_b32 v10, 3, v10        ; 4c*2
    v_add3_u32 v11, v11, v12, v10
    v_add_u32 v11, 0x4000, v11
    s_lshl_b32 s20, s19, 1           ; seg j=0
    v_xor_b32 v12, s20, v9
    v_lshlrev_b32 v12, 6, v12
    v_add_u32 v8, v11, v12           ; W base j=0
    s_add_u32 s20, s20, 1
    v_xor_b32 v12, s20, v9
    v_lshlrev_b32 v12, 6, v12
    v_add_u32 v9, v11, v12           ; W base j=1
""")
    for i in range(64):
        a(f"    v_mov_b32 v{48+i}, 0")
    a("""
    v_mov_b32 v10, v4
    v_mov_b32 v11, v5
    v_mov_b32 v12, v6
    v_mov_b32 v13, v7
    v_mov_b32 v14, v8
    v_mov_b32 v15, v9
    s_mov_b32 s21, 0                 ; stage
    s_mov_b32 s22, 0
    s_cmp_ge_u32 s17, 10
    s_cbranch_scc1 K1_GEMM_V
""")

    def reads(ks, st):
        b = 16 + 16 * st
        a(f"    ds_read_b128 v[{b}:{b+3}], v{10+ks}")
        a(f"    ds_read_b128 v[{b+4}:{b+7}], v{10+ks} offset:4096")
        for j in range(2):
            a(f"    ds_read_b64_tr_b16 v[{b+8+4*j}:{b+9+4*j}], v{14+j} offset:{ks*4096}")
            a(f"    ds_read_b64_tr_b16 v[{b+10+4*j}:{b+11+4*j}], v{14+j} offset:{ks*4096+1024}")

    def mfmas(st, vmode):
        b = 16 + 16 * st
        for i in range(2):
            for j in range(2):
                acc = 48 + 16 * (2 * i + j)
                xf = f"v[{b+4*i}:{b+4*i+3}]"
                wf = f"v[{b+8+4*j}:{b+8+4*j+3}]"
                if vmode:
                    a(f"    v_mfma_f32_32x32x16_bf16 v[{acc}:{acc+15}], {xf}, {wf}, v[{acc}:{acc+15}]")
                else:
                    a(f"    v_mfma_f32_32x32x16_bf16 v[{acc}:{acc+15}], {wf}, {xf}, v[{acc}:{acc+15}]")

    def mainloop(tag, vmode):
        a("    s_barrier")
        reads(0, 0)
        a.label(f"K1_LOOP_{tag}")
        reads(1, 1)
        a("    s_waitcnt lgkmcnt(6)")
        mfmas(0, vmode)
        reads(2, 0)
        a("    s_waitcnt lgkmcnt(6)")
        mfmas(1, vmode)
        reads(3, 1)
        a("    s_waitcnt lgkmcnt(6)")
        mfmas(0, vmode)
        a(f"""
    s_add_u32 s21, s21, 1
    s_add_u32 s22, s22, 0x8000
    s_cmp_eq_u32 s22, 0x{NSLOT*0x8000:x}
    s_cselect_b32 s22, 0, s22
    s_cmp_eq_u32 s21, {NST}
    s_waitcnt lgkmcnt(0)
    s_cbranch_scc1 K1_LAST_{tag}
    s_barrier
    v_add_u32 v10, s22, v4
    v_add_u32 v11, s22, v5
    v_add_u32 v12, s22, v6
    v_add_u32 v13, s22, v7
    v_add_u32 v14, s22, v8
    v_add_u32 v15, s22, v9
""")
        reads(0, 0)
        mfmas(1, vmode)
        a(f"    s_branch K1_LOOP_{tag}")
        a.label(f"K1_LAST_{tag}")
        mfmas(1, vmode)

    mainloop("QK", False)
    a(f"""
    s_cmp_ge_u32 s17, 5
    s_cselect_b32 s20, 0x{KH:x}, 0
    s_cselect_b32 s23, 5, 0
    s_sub_u32 s23, s17, s23
    s_add_u32 s28, s8, s20
    s_addc_u32 s29, s9, 0
    s_mov_b32 s30, 0x{REG:x}
    s_mov_b32 s31, 0x20000
    s_lshl_b32 s23, s23, 7
    s_lshl_b32 s24, s19, 6
    s_add_u32 s23, s23, s24          ; c0
    v_lshlrev_b32 v2, 2, v2          ; 4*hh
    v_add_u32 v2, s23, v2            ; colbase
    s_lshl_b32 s24, s16, 7
    s_lshl_b32 s25, s18, 6
    s_add_u32 s24, s24, s25          ; s0
    v_add_u32 v3, s24, v1            ; s
    v_mul_u32_u24 v3, 40, v3         ; s*40
    s_mov_b32 s25, 52429
    s_mov_b32 s26, 81880
""")
    for j in range(2):
        for g in range(4):
            a(f"    v_add_u32 v4, {32*j+8*g}, v2")
            a("    v_mul_u32_u24 v5, s25, v4")
            a("    v_lshrrev_b32 v5, 20, v5")
            a("    v_lshl_add_u32 v4, v4, 1, v3")
            a(f"    v_mad_u32_u24 v4, v5, s26, v4")
            for i in range(2):
                acc = 48 + 16 * (2 * i + j) + 4 * g
                d = 16 + 2 * ((2 * g + i) % 8)
                a(f"    v_cvt_pk_bf16_f32 v{d}, v{acc}, v{acc+1}")
                a(f"    v_cvt_pk_bf16_f32 v{d+1}, v{acc+2}, v{acc+3}")
                a(f"    buffer_store_dwordx2 v[{d}:{d+1}], v4, s[28:31], 0 offen offset:{1280*i}")
    a("    s_branch K1_END")

    a.label("K1_GEMM_V")
    mainloop("V", True)
    a(f"""
    s_add_u32 s28, s8, 0x{VT:x}
    s_addc_u32 s29, s9, 0
    s_mov_b32 s30, 0x{REG:x}
    s_mov_b32 s31, 0x20000
    s_sub_u32 s23, s17, 10
    s_lshl_b32 s23, s23, 7
    s_lshl_b32 s24, s19, 6
    s_add_u32 s23, s23, s24          ; c0
    v_add_u32 v3, s23, v1            ; col
    v_lshlrev_b32 v3, 12, v3         ; col*4096
    s_lshl_b32 s24, s16, 7
    s_lshl_b32 s25, s18, 6
    s_add_u32 s24, s24, s25          ; s0
    s_lshl_b32 s24, s24, 1
    v_lshlrev_b32 v2, 4, v2          ; 8hh*2
    v_add3_u32 v3, v3, v2, s24
    v_add_u32 v4, 0x20000, v3        ; j=1
""")
    n = 0
    for j in range(2):
        for i in range(2):
            for G in range(2):
                acc = 48 + 16 * (2 * i + j) + 8 * G
                d = 16 + 4 * (n % 8)
                n += 1
                for q in range(4):
                    a(f"    v_cvt_pk_bf16_f32 v{d+q}, v{acc+2*q}, v{acc+2*q+1}")
                a(f"    buffer_store_dwordx4 v[{d}:{d+3}], v{3+j}, s[28:31], 0 offen offset:{64*i+32*G}")
    a("    s_branch K1_END")

    a.label("K1_HELPER")
    srd(a, 20, 4, 5, 2048 * 1280)
    srd(a, 24, 6, 7, 640 * 3840)
    a("""
    s_sub_u32 s18, s3, 4             ; hw
    v_lshrrev_b32 v1, 3, v0          ; lane>>3
    v_and_b32 v2, 7, v0              ; slot
    v_lshrrev_b32 v3, 4, v0          ; lane>>4
    s_lshl_b32 s19, s16, 7
    s_lshl_b32 s28, s18, 5
    s_add_u32 s19, s19, s28
    v_add_u32 v4, s19, v1            ; row (j=0)
    v_mul_u32_u24 v4, 0x500, v4      ; *1280
    v_xor_b32 v5, v2, v3
    v_xor_b32 v6, 4, v5
    v_lshl_add_u32 v10, v5, 4, v4                 ; j=0
    v_lshl_add_u32 v11, v6, 4, v4
    v_add_u32 v11, 0x2400, v11                    ; j=1: +8*1280-1024
    v_add_u32 v12, 0x4800, v10                    ; j=2: +16*1280-2048
    v_add_u32 v13, 0x4800, v11                    ; j=3
    ; W
    s_lshl_b32 s28, s18, 4           ; hw*16
    v_add_u32 v4, s28, v3            ; krow j=0
    v_mul_u32_u24 v4, 0xf00, v4      ; *3840
    v_and_b32 v5, 15, v0
    v_lshlrev_b32 v6, 2, v3
    v_xor_b32 v5, v5, v6
    v_lshl_add_u32 v4, v5, 4, v4
    s_lshl_b32 s28, s17, 8           ; nt*256
    v_add_u32 v14, s28, v4                        ; j=0
    v_add_u32 v15, 0x3800, v14                    ; +4*3840-1024
    v_add_u32 v16, 0x7000, v14
    v_add_u32 v17, 0xa800, v14
    s_lshl_b32 s19, s18, 12          ; hw*4096
    s_mul_i32 s28, s2, 3
    s_add_u32 s28, s28, s18
    s_cmp_eq_u32 s18, 3
    s_cbranch_scc1 K1_HELPER_NP
    s_cmp_ge_u32 s28, 640
    s_cbranch_scc1 K1_HELPER_NP
""")

    def dma(vq, st):
        slot = st % NSLOT
        a(f"    s_add_u32 m0, s19, 0x{slot*0x8000:x}")
        a(f"    s_mov_b32 s29, {st*128}")
        for j in range(4):
            vq.issue(f"D{st}", f"    buffer_load_dwordx4 v{10+j}, s[20:23], s29 offen offset:{1024*j} lds")
        a(f"    s_add_u32 m0, s19, 0x{slot*0x8000+0x4000:x}")
        a(f"    s_mov_b32 s29, {st*245760}")
        for j in range(4):
            vq.issue(f"D{st}", f"    buffer_load_dwordx4 v{14+j}, s[24:27], s29 offen offset:{1024*j} lds")

    def helper(prep):
        vq = VQ(a)
        chunks = [[] for _ in range(NST)]
        if prep:
            srd(a, 32, 10, 11, 2048 * 1280)
            srd(a, 36, 12, 13, 2048 * 1280)
            srd(a, 40, 14, 15, 640 * 8)
            srd(a, 44, 8, 9, 2 * REG, XR0)
            a("""
    s_mul_i32 s30, s28, 3277
    s_lshr_b32 s30, s30, 16          ; sg
    s_mul_i32 s31, s30, 20
    s_sub_u32 s31, s28, s31          ; cg
    s_lshl_b32 s30, s30, 6           ; sg*64
    s_lshl_b32 s31, s31, 5           ; cg*32
    v_and_b32 v20, 15, v0            ; cp
    v_lshlrev_b32 v20, 1, v20
    v_add_u32 v20, s31, v20          ; ch
    v_lshlrev_b32 v21, 4, v3
    v_add_u32 v21, s30, v21          ; s0
    v_mul_u32_u24 v22, 0x500, v21
    v_lshl_add_u32 v22, v20, 1, v22  ; vpos
    v_subrev_u32 v23, 0x1400, v22
    v_lshlrev_b32 v24, 3, v20
    v_lshlrev_b32 v25, 12, v20       ; ch*4096
    v_lshlrev_b32 v21, 1, v21
    v_sub_u32 v25, v25, v21
    v_add_u32 v25, 0xfe0, v25
    s_mov_b32 s50, 5120
    s_mov_b32 s51, 10240
    s_mov_b32 s52, 15360
    s_mov_b32 s53, 4096
    s_mov_b32 s54, 0x280000
    s_mov_b32 s55, 0x281000
    s_mov_b32 s56, 0xffff0000
""")
        dma(vq, 0)
        dma(vq, 1)
        KR, VR, SK, W, KL, KHI, XL, XH, PK = 32, 52, 72, 76, 84, 104, 124, 142, 160
        if prep:
            so = ["0", "s50", "s51", "s52"]
            vq.issue("P", f"    buffer_load_dwordx4 v[{SK}:{SK+3}], v24, s[40:43], 0 offen")
            for r in range(4):
                vq.issue("P", f"    buffer_load_dword v{KR+r}, v23, s[32:35], 0 offen offset:{1280*r}")
            vq.issue("P", f"    buffer_load_dword v{VR}, v23, s[36:39], 0 offen offset:3840")
            for r in range(16):
                vq.issue("P", f"    buffer_load_dword v{KR+4+r}, v22, s[32:35], {so[r>>2]} offen offset:{1280*(r&3)}")
                vq.issue("P", f"    buffer_load_dword v{VR+1+r}, v22, s[36:39], {so[r>>2]} offen offset:{1280*(r&3)}")
            ops = []
            for c2 in range(2):
                for q in range(2):
                    ops.append(f"    v_lshlrev_b32 v{W+4*c2+2*q}, 16, v{SK+2*c2+q}")
                    ops.append(f"    v_and_b32 v{W+4*c2+2*q+1}, s56, v{SK+2*c2+q}")
            for r in range(3):
                ops.append(f"    v_lshlrev_b32 v{KL+r}, 16, v{KR+r}")
                ops.append(f"    v_and_b32 v{KHI+r}, s56, v{KR+r}")
            for r in range(17):
                rr = r + 3
                ops.append(f"    v_lshlrev_b32 v{KL+rr}, 16, v{KR+rr}")
                ops.append(f"    v_and_b32 v{KHI+rr}, s56, v{KR+rr}")
                for (kb, xb, wb) in ((KL, XL, W), (KHI, XH, W + 4)):
                    ops.append(f"    v_mul_f32 v{xb+r}, v{kb+rr}, v{wb}")
                    ops.append(f"    v_fmac_f32 v{xb+r}, v{kb+rr-1}, v{wb+1}")
                    ops.append(f"    v_fmac_f32 v{xb+r}, v{kb+rr-2}, v{wb+2}")
                    ops.append(f"    v_fmac_f32 v{xb+r}, v{kb+rr-3}, v{wb+3}")
                ops.append(f"    v_lshlrev_b32 v26, 16, v{VR+r}")
                ops.append(f"    v_and_b32 v27, s56, v{VR+r}")
                ops.append(f"    v_mul_f32 v{XL+r}, v{XL+r}, v26")
                ops.append(f"    v_mul_f32 v{XH+r}, v{XH+r}, v27")
            for c2, xb in enumerate((XL, XH)):
                for e in range(2):
                    p = PK + 16 * c2 + 8 * e
                    for q in range(8):
                        t0 = 14 + e - 2 * q
                        ops.append(f"    v_cvt_pk_bf16_f32 v{p+q}, v{xb+t0+1}, v{xb+t0}")
            per = (len(ops) + 5) // 6
            for i, o in enumerate(ops):
                chunks[2 + i // per].append(o)
        dma(vq, 2)
        dma(vq, 3)
        dma(vq, 4)
        for s in range(NST):
            vq.wait(f"D{s}")
            a("    s_barrier")
            if s >= 1 and s + 4 < NST:
                dma(vq, s + 4)
            for o in chunks[s]:
                a(o)
            if prep and s == 7:
                so2 = {(0, 0): "0", (1, 0): "s53", (0, 1): "s54", (1, 1): "s55"}
                for c2 in range(2):
                    for e in range(2):
                        p = PK + 16 * c2 + 8 * e
                        for hf in range(2):
                            vq.issue("S", f"    buffer_store_dwordx4 v[{p+4*hf}:{p+4*hf+3}], v25, s[44:47], {so2[(c2,e)]} offen offset:{16*hf}")
        a("    s_branch K1_END")

    helper(True)
    a.label("K1_HELPER_NP")
    helper(False)
    a.label("K1_END")
    a("    s_endpgm")


K1_DESC = """
.amdhsa_kernel k1_kernel
  .amdhsa_next_free_vgpr 192
  .amdhsa_next_free_sgpr 102
  .amdhsa_accum_offset 192
  .amdhsa_group_segment_fixed_size 0
  .amdhsa_kernarg_size 96
  .amdhsa_user_sgpr_count 2
  .amdhsa_user_sgpr_kernarg_segment_ptr 1
  .amdhsa_system_sgpr_workgroup_id_x 1
.end_amdhsa_kernel
"""
```

```python
from asmlib import Asm
from k1 import QH, KH, VT, OO, XR0, XR1, ZT, REG, srd
import math

LDS = 35776
LAUNCH = f"; @launch kernel=k2_kernel grid=(1152,1,1) block=(256,1,1) lds={LDS}"
PL0, PL1, PL2, VTL, ONES = 0, 6144, 12288, 18432, 34816
HCS, XC0, XCS = 4416, 17664, 5152


def gen_k2(a):
    a("""
.globl k2_kernel
.p2align 8
.type k2_kernel,@function
k2_kernel:
    s_cmp_ge_u32 s2, 1152
    s_cbranch_scc1 K2_END
    s_load_dwordx2 s[4:5], s[0:1], 88
    s_load_dwordx2 s[6:7], s[0:1], 32
    s_load_dwordx2 s[8:9], s[0:1], 40
    v_lshrrev_b32 v1, 6, v0
    v_and_b32 v0, 63, v0
    v_readfirstlane_b32 s3, v1
    s_cmp_ge_u32 s2, 768
    s_cbranch_scc1 K2_CONV_B
    s_lshr_b32 s16, s2, 8
    s_cmp_eq_u32 s16, 1
    s_cbranch_scc1 K2_CONV_A
    s_lshr_b32 s16, s2, 1
    s_and_b32 s16, s16, 0x100
    s_and_b32 s17, s2, 0xff
    s_or_b32 s17, s17, s16           ; idx 0..511
    s_and_b32 s16, s17, 31
    s_lshr_b32 s17, s17, 5           ; qc
    s_lshl_b32 s18, s17, 7           ; q0
    s_sub_u32 s19, s18, 256
    s_waitcnt lgkmcnt(0)
""")
    srd(a, 20, 4, 5, REG, QH)
    srd(a, 24, 4, 5, REG, KH)
    srd(a, 28, 4, 5, REG, VT)
    srd(a, 32, 4, 5, REG, OO)
    a("""
    s_mul_i32 s36, s16, 81920        ; h*2048*40
    v_add_u32 v2, s19, v0
""")
    for i in range(5):
        if i == 4:
            a("    s_cmp_ge_u32 s3, 2")
            a("    s_cbranch_scc1 K2A_KDONE")
        a(f"""
    s_add_u32 s37, s3, {4*i}          ; t
    s_mul_i32 s38, s37, 43
    s_lshr_b32 s38, s38, 8           ; p
    s_mul_i32 s39, s38, 6
    s_sub_u32 s39, s37, s39          ; j
    s_lshl_b32 s39, s39, 6
    s_lshl_b32 s38, s38, 4
    s_add_u32 s38, s38, s36
    s_lshl_b32 m0, s37, 10
    v_add_u32 v3, s39, v2
    v_max_i32 v3, 0, v3
    v_mul_u32_u24 v3, 40, v3
    buffer_load_dwordx4 v3, s[24:27], s38 offen lds
""")
    a.label("K2A_KDONE")
    a("""
    s_mul_i32 s36, s16, 81920        ; h*20*4096
    s_movk_i32 s40, 1338
""")
    for i in range(4):
        a(f"""
    s_lshl_b32 s37, s3, 2
    s_add_u32 s37, s37, {i}          ; t
    s_lshl_b32 s38, s37, 6
    v_add_u32 v3, s38, v0            ; ci
    v_mul_u32_u24 v4, s40, v3
    v_lshrrev_b32 v4, 16, v4         ; row
    v_mul_u32_u24 v5, 49, v4
    v_sub_u32 v5, v3, v5             ; pos
    v_min_u32 v5, 47, v5
    v_min_u32 v4, 19, v4
    v_lshl_add_u32 v5, v5, 3, s19    ; key0
    v_max_i32 v5, 0, v5
    v_lshlrev_b32 v5, 1, v5
    v_lshl_add_u32 v5, v4, 12, v5
    s_lshl_b32 s38, s37, 10
    s_add_u32 m0, s38, {VTL}
    buffer_load_dwordx4 v5, s[28:31], s36 offen lds
""")
    a(f"""
    v_mov_b32 v8, 0x3f803f80
    v_mov_b32 v9, v8
    v_mov_b32 v10, v8
    v_mov_b32 v11, v8
    v_min_u32 v3, 59, v0
    v_lshlrev_b32 v3, 4, v3
    ds_write_b128 v3, v[8:11] offset:{ONES}
    v_and_b32 v1, 31, v0             ; q / key / d
    v_lshrrev_b32 v2, 5, v0
    s_lshl_b32 s37, s3, 5            ; 32w
    s_add_u32 s38, s18, s37          ; qw
    s_lshl_b32 s39, s16, 11
    s_add_u32 s39, s39, s38          ; h*2048 + qw
    v_add_u32 v3, s39, v1
    v_mul_u32_u24 v3, 40, v3
    v_lshl_add_u32 v3, v2, 4, v3
    v_cmp_eq_u32 vcc, 0, v2
    v_mov_b32 v5, 0x7fffffff
    v_cndmask_b32 v4, v5, v3, vcc
    buffer_load_dwordx4 v[32:35], v3, s[20:23], 0 offen
    buffer_load_dwordx2 v[36:37], v4, s[20:23], 0 offen offset:32
    v_mov_b32 v38, 0
    v_mov_b32 v39, 0
    v_mov_b32 v22, 0
    v_mov_b32 v23, 0
    v_mov_b32 v30, 0
    v_mov_b32 v31, 0
    v_add_u32 v5, s37, v1            ; 32w + key
    v_lshlrev_b32 v5, 4, v5
    v_mul_u32_u24 v6, {PL1}, v2
    v_add_u32 v6, v6, v5             ; vK0
    v_add_u32 v7, {PL2}, v5          ; vK2
    v_mul_u32_u24 v8, 784, v1
    v_add_u32 v8, {VTL}, v8
    v_mov_b32 v9, {ONES+64}
    v_mov_b32 v10, {ONES+192}
    v_cmp_le_u32 vcc, 28, v1
    v_cndmask_b32 v9, v9, v10, vcc
    v_cmp_le_u32 vcc, 20, v1
    v_cndmask_b32 v8, v8, v9, vcc
    v_lshlrev_b32 v9, 4, v2          ; 8hh*2
    s_lshl_b32 s39, s3, 6
    v_add3_u32 v8, v8, v9, s39       ; vV
    v_lshlrev_b32 v9, 2, v2
    v_sub_u32 v9, v1, v9
""")
    for r in range(16):
        a(f"    v_cmp_le_i32 s[{40+2*r}:{41+2*r}], {8*(r>>2)+(r&3)}, v9")
    for r in range(16):
        a(f"    v_mov_b32 v{208+r}, 0")
    a("""
    s_waitcnt vmcnt(0) lgkmcnt(0)
    s_barrier
""")
    SB = 64

    def kreads(kb):
        b = 16 + 8 * (kb & 1)
        a(f"    ds_read_b128 v[{b}:{b+3}], v6 offset:{kb*512}")
        a(f"    ds_read_b64 v[{b+4}:{b+5}], v7 offset:{kb*512}")

    kreads(0)
    for kb in range(9):
        if kb < 8:
            kreads(kb + 1)
            a("    s_waitcnt lgkmcnt(2)")
        else:
            a("    s_waitcnt lgkmcnt(0)")
        b = 16 + 8 * (kb & 1)
        s = SB + 16 * kb
        a(f"    v_mfma_f32_32x32x16_bf16 v[{s}:{s+15}], v[{b}:{b+3}], v[32:35], 0")
        a(f"    v_mfma_f32_32x32x16_bf16 v[{s}:{s+15}], v[{b+4}:{b+7}], v[36:39], v[{s}:{s+15}]")
    def vreads(kb):
        b = 40 + 8 * (kb & 1)
        a(f"    ds_read_b128 v[{b}:{b+3}], v8 offset:{kb*64}")
        a(f"    ds_read_b128 v[{b+4}:{b+7}], v8 offset:{kb*64+32}")
    vreads(0)
    a("""
    v_mov_b32 v10, 0xff800000
    s_cmp_ge_u32 s38, 256
    s_cbranch_scc1 K2A_NOFIX
    s_nop 7
    s_nop 7
    s_lshr_b32 s39, s38, 5
    s_sub_u32 s39, 8, s39
""")
    for kb in range(8):
        if kb:
            a(f"    s_cmp_le_u32 s39, {kb}")
            a("    s_cbranch_scc1 K2A_NOFIX")
        for r in range(16):
            a(f"    v_mov_b32 v{SB+16*kb+r}, v10")
    a.label("K2A_NOFIX")
    a("    s_nop 7")
    a("    s_nop 3")
    for r in range(16):
        a(f"    v_cndmask_b32 v{SB+r}, v{SB+r}, v10, s[{40+2*r}:{41+2*r}]")
    for r in range(16):
        a(f"    v_cndmask_b32 v{SB+128+r}, v10, v{SB+128+r}, s[{40+2*r}:{41+2*r}]")
    a(f"    v_max3_f32 v11, v{SB}, v{SB+1}, v{SB+2}")
    a(f"    v_max3_f32 v12, v{SB+3}, v{SB+4}, v{SB+5}")
    i = 6
    tog = 0
    while i < 144:
        d = 11 + tog
        a(f"    v_max3_f32 v{d}, v{d}, v{SB+i}, v{SB+i+1}")
        i += 2
        tog ^= 1
    c = (20 ** -0.5) * math.log2(math.e)
    import struct
    cb = struct.unpack("<I", struct.pack("<f", c))[0]
    a(f"""
    v_max_f32 v11, v11, v12
    v_mov_b32 v12, v11
    v_permlane32_swap_b32 v11, v12
    v_max_f32 v11, v11, v12
    s_mov_b32 s39, 0x{cb:08x}
    v_mul_f32 v11, s39, v11
""")
    for kb in range(9):
        s = SB + 16 * kb
        for r in range(16):
            a(f"    v_fma_f32 v{s+r}, v{s+r}, s39, -v11")
        for r in range(16):
            a(f"    v_exp_f32 v{s+r}, v{s+r}")
        for q in range(8):
            a(f"    v_cvt_pk_bf16_f32 v{s+q}, v{s+2*q}, v{s+2*q+1}")
        if kb < 8:
            vreads(kb + 1)
            a("    s_waitcnt lgkmcnt(2)")
        else:
            a("    s_waitcnt lgkmcnt(0)")
        b = 40 + 8 * (kb & 1)
        a(f"    v_mfma_f32_32x32x16_bf16 v[208:223], v[{b}:{b+3}], v[{s}:{s+3}], v[208:223]")
        a(f"    v_mfma_f32_32x32x16_bf16 v[208:223], v[{b+4}:{b+7}], v[{s+4}:{s+7}], v[208:223]")
    a("""
    v_add_u32 v3, s38, v1
    v_mul_u32_u24 v3, 0x500, v3
    s_mul_i32 s39, s16, 40
    v_lshlrev_b32 v4, 3, v2
    v_add3_u32 v3, v3, v4, s39
    v_cmp_eq_u32 vcc, 0, v2
    v_mov_b32 v5, 0x7fffffff
    v_cndmask_b32 v4, v5, v3, vcc
    v_rcp_f32 v11, v220
""")
    for r in range(12):
        a(f"    v_mul_f32 v{208+r}, v{208+r}, v11")
    for g in range(3):
        a(f"    v_cvt_pk_bf16_f32 v{16+2*g}, v{208+4*g}, v{209+4*g}")
        a(f"    v_cvt_pk_bf16_f32 v{17+2*g}, v{210+4*g}, v{211+4*g}")
        a(f"    buffer_store_dwordx2 v[{16+2*g}:{17+2*g}], v{3 if g < 2 else 4}, s[32:35], 0 offen offset:{16*g}")
    a("    s_branch K2_END")

    a.label("K2_CONV_B")
    a("    s_sub_u32 s16, s2, 512")
    a("    s_branch K2_CONV")
    a.label("K2_CONV_A")
    a("    s_sub_u32 s16, s2, 256")
    a.label("K2_CONV")
    a(f"""
    s_lshl_b32 s17, s16, 12          ; ch*4096
    s_lshr_b32 s18, s16, 1
    s_lshl_b32 s18, s18, 2
    s_waitcnt lgkmcnt(0)
    s_load_dword s19, s[8:9], s18
    s_add_u32 s20, s6, s17
    s_addc_u32 s21, s7, 0
    s_mov_b32 s22, 0x1000
    s_mov_b32 s23, 0x20000
    s_and_b32 s36, s3, 1             ; e
    s_mul_i32 s37, s36, 0x{REG:x}
    s_add_u32 s37, s37, s17
    s_add_u32 s37, s37, 0x{XR0:x}
    s_add_u32 s24, s4, s37
    s_addc_u32 s25, s5, 0
    s_mov_b32 s26, 0x1000
    s_mov_b32 s27, 0x20000
    s_add_u32 s37, s17, 0x{ZT:x}
    s_add_u32 s28, s4, s37
    s_addc_u32 s29, s5, 0
    s_mov_b32 s30, 0x1000
    s_mov_b32 s31, 0x20000
    ; h copy c = w
    s_mul_i32 s37, s3, {HCS}
    s_mov_b32 m0, s37
    s_sub_u32 s38, s3, 16
    v_add_u32 v2, s38, v0
    v_lshlrev_b32 v2, 2, v2
    buffer_load_dword v2, s[20:23], 0 offen lds
    s_add_u32 m0, s37, 256
    s_lshl_b32 s38, s3, 2
    s_add_u32 s38, s38, 192
    v_lshlrev_b32 v3, 4, v0
    v_add_u32 v2, s38, v3
    buffer_load_dwordx4 v2, s[20:23], 0 offen lds
    buffer_load_dwordx4 v2, s[20:23], 0 offen offset:1024 lds
    buffer_load_dwordx4 v2, s[20:23], 0 offen offset:2048 lds
    buffer_load_dwordx4 v2, s[20:23], 0 offen offset:3072 lds
    ; x copy e
    s_lshr_b32 s38, s3, 1
    s_mul_i32 s38, s38, 3072
    s_mul_i32 s37, s36, {XCS}
    s_add_u32 s37, s37, s38
    s_add_u32 m0, s37, {XC0}
    v_add_u32 v2, s38, v3
    buffer_load_dwordx4 v2, s[24:27], 0 offen lds
    buffer_load_dwordx4 v2, s[24:27], 0 offen offset:1024 lds
    s_cmp_ge_u32 s3, 2
    s_cbranch_scc1 K2C_XDONE
    buffer_load_dwordx4 v2, s[24:27], 0 offen offset:2048 lds
""")
    a.label("K2C_XDONE")
    a(f"""
    v_and_b32 v1, 15, v0             ; m / n
    v_lshrrev_b32 v2, 4, v0
    v_add_u32 v4, 1, v1
    v_and_b32 v5, 3, v4              ; c'
    v_lshrrev_b32 v4, 2, v4
    v_add_u32 v4, v4, v2
    v_lshlrev_b32 v4, 4, v4
    v_mul_u32_u24 v5, {HCS}, v5
    s_lshl_b32 s37, s3, 7            ; 128w
    v_add3_u32 v6, v4, v5, s37       ; A addr
    v_and_b32 v4, 1, v1
    v_mul_u32_u24 v4, {XCS}, v4
    v_lshrrev_b32 v5, 1, v1
    v_lshlrev_b32 v5, 6, v5
    v_sub_u32 v4, v4, v5
    v_lshlrev_b32 v5, 4, v2
    v_add3_u32 v7, v4, v5, s37
    v_add_u32 v7, {XC0+448}, v7      ; B addr
    ; D fragment
    v_lshlrev_b32 v4, 2, v2
    v_add_u32 v4, v4, v1
    v_sub_u32 v4, 15, v4             ; t = 15 - m - 4kq
    s_waitcnt lgkmcnt(0)
    s_lshr_b32 s38, s19, 16
    s_and_b32 s39, s19, 0xffff
    s_bitcmp1_b32 s16, 0
    s_cselect_b32 s38, s38, s39
    s_cmp_eq_u32 s3, 0
    s_cselect_b32 s38, s38, 0
    v_mov_b32 v5, s38
""")
    for q in range(4):
        a(f"    v_cmp_eq_u32 vcc, {q}, v4")
        a(f"    v_cndmask_b32 v{176+q}, 0, v5, vcc")
    for r in range(32):
        a(f"    v_mov_b32 v{16+r}, 0")
    a("""
    s_waitcnt vmcnt(0)
    s_barrier
""")
    AF = [48, 112]
    BF = [80, 144]

    def rdA(cl, i):
        b = AF[cl] + 4 * i
        return f"    ds_read_b128 v[{b}:{b+3}], v6 offset:{512*i+64*cl}"

    def rdB(cl, c):
        b = BF[cl] + 4 * c
        return f"    ds_read_b128 v[{b}:{b+3}], v7 offset:{512*(7-c)+64*cl}"

    def mm(cl, i, c):
        t = i + c
        A = AF[cl] + 4 * i
        B = BF[cl] + 4 * c
        return f"    v_mfma_f32_16x16x32_bf16 v[{16+4*t}:{19+4*t}], v[{A}:{A+3}], v[{B}:{B+3}], v[{16+4*t}:{19+4*t}]"

    a(rdA(0, 0))
    for c in range(8):
        a(rdB(0, c))
    for i in range(1, 8):
        a(rdA(0, i))
    a("    s_waitcnt lgkmcnt(7)")
    for c in range(8):
        a(mm(0, 0, c))
    for c in range(8):
        B = BF[0] + 4 * c
        a(f"    v_mfma_f32_16x16x32_bf16 v[{16+4*c}:{19+4*c}], v[176:179], v[{B}:{B+3}], v[{16+4*c}:{19+4*c}]")
    a("    s_waitcnt lgkmcnt(0)")
    pend = [rdA(1, 0)] + [rdB(1, c) for c in range(8)] + [rdA(1, i) for i in range(1, 8)]
    for i in range(1, 8):
        for c in range(8 - i):
            a(mm(0, i, c))
            if pend:
                a(pend.pop(0))
    a("    s_waitcnt lgkmcnt(7)")
    for c in range(8):
        a(mm(1, 0, c))
    a("    s_waitcnt lgkmcnt(0)")
    a("    s_barrier")
    for i in range(1, 8):
        for c in range(8 - i):
            a(mm(1, i, c))
    a("""
    v_lshlrev_b32 v3, 4, v0
    s_lshl_b32 s37, s3, 13
    v_add_u32 v4, s37, v3
""")
    for t in range(8):
        a(f"    ds_write_b128 v4, v[{16+4*t}:{19+4*t}] offset:{1024*t}")
    a("""
    s_lshl_b32 s37, s3, 11
    v_add_u32 v4, s37, v3
    s_waitcnt lgkmcnt(0)
    s_barrier
""")
    for tt in range(2):
        for sw in range(4):
            b = 48 + 16 * tt + 4 * sw
            a(f"    ds_read_b128 v[{b}:{b+3}], v4 offset:{8192*sw+1024*tt}")
    a("""
    v_lshrrev_b32 v5, 1, v1
    v_lshlrev_b32 v5, 6, v5
    v_and_b32 v8, 1, v1
    v_lshlrev_b32 v8, 3, v8
    v_lshlrev_b32 v9, 4, v2
    v_add3_u32 v5, v5, v8, v9
    s_lshl_b32 s37, s3, 10
    v_add_u32 v5, s37, v5
    s_waitcnt lgkmcnt(0)
""")
    for tt in range(2):
        b = 48 + 16 * tt
        for r in range(4):
            a(f"    v_add_f32 v{b+r}, v{b+r}, v{b+4+r}")
            a(f"    v_add_f32 v{b+8+r}, v{b+8+r}, v{b+12+r}")
            a(f"    v_add_f32 v{b+r}, v{b+r}, v{b+8+r}")
        a(f"    v_cvt_pk_bf16_f32 v{10+2*tt}, v{b}, v{b+1}")
        a(f"    v_cvt_pk_bf16_f32 v{11+2*tt}, v{b+2}, v{b+3}")
        a(f"    buffer_store_dwordx2 v[{10+2*tt}:{11+2*tt}], v5, s[28:31], 0 offen offset:{512*tt}")
    a.label("K2_END")
    a("    s_endpgm")


DESC = """
.amdhsa_kernel k2_kernel
  .amdhsa_next_free_vgpr 224
  .amdhsa_next_free_sgpr 102
  .amdhsa_accum_offset 224
  .amdhsa_group_segment_fixed_size 0
  .amdhsa_kernarg_size 96
  .amdhsa_user_sgpr_count 2
  .amdhsa_user_sgpr_kernarg_segment_ptr 1
  .amdhsa_system_sgpr_workgroup_id_x 1
.end_amdhsa_kernel
"""
```

```python
from asmlib import Asm
from k1 import QH, KH, VT, OO, XR0, XR1, ZT, REG, srd, VQ

LDS = 102400 + 20480
LAUNCH = f"; @launch kernel=k3_kernel grid=(256,1,1) block=(256,1,1) lds={LDS}"


def gen_k3(a):
    a("""
.globl k3_kernel
.p2align 8
.type k3_kernel,@function
k3_kernel:
    s_cmp_ge_u32 s2, 256
    s_cbranch_scc1 K3_END
    s_load_dwordx2 s[4:5], s[0:1], 88
    s_load_dwordx2 s[6:7], s[0:1], 64
    s_load_dwordx2 s[8:9], s[0:1], 0
    s_load_dwordx2 s[10:11], s[0:1], 72
    v_lshrrev_b32 v1, 6, v0
    v_and_b32 v0, 63, v0
    v_readfirstlane_b32 s3, v1
    s_and_b32 s16, s2, 7
    s_lshl_b32 s16, s16, 2
    s_lshr_b32 s17, s2, 3
    s_and_b32 s18, s17, 3
    s_add_u32 s16, s16, s18          ; st
    s_lshr_b32 s17, s2, 5            ; ct
    s_lshl_b32 s16, s16, 6           ; s0
    s_mul_i32 s18, s17, 160          ; ct*80*2
    s_lshr_b32 s19, s3, 1            ; kh2
    s_and_b32 s36, s3, 1             ; sh
    s_waitcnt lgkmcnt(0)
""")
    srd(a, 20, 4, 5, REG, OO)
    srd(a, 24, 6, 7, 640 * 1280)
    srd(a, 28, 4, 5, REG, ZT)
    srd(a, 32, 8, 9, 2048 * 1280)
    srd(a, 40, 10, 11, 2048 * 2560)
    vq = VQ(a)
    a("""
    s_lshl_b32 s37, s3, 4
    s_add_u32 s37, s37, s16          ; row0 = s0 + 16w
    v_lshlrev_b32 v2, 2, v0
    v_add_u32 v2, s18, v2            ; ch*2
    v_lshlrev_b32 v3, 11, v2         ; ch*4096
    s_lshl_b32 s38, s37, 1
    v_add_u32 v3, s38, v3
    s_mul_i32 s38, s37, 1280
    v_add_u32 v4, s38, v2            ; q off
    s_mul_i32 s38, s37, 2560
    v_add_u32 v5, s38, v2
    v_mov_b32 v6, 0x7fffffff
    v_cmp_gt_u32 vcc, 40, v0
    v_cndmask_b32 v3, v6, v3, vcc
    v_cndmask_b32 v4, v6, v4, vcc
    v_cndmask_b32 v5, v6, v5, vcc
    s_mov_b32 s44, 4096
    s_mov_b32 s45, 0xffff0000
""")
    for i in range(1, 8):
        a(f"    s_mov_b32 s{48+i}, {5120*i}")
    so = lambda i: "0" if i == 0 else f"s{48+i}"
    vq.issue("F", "    buffer_load_dwordx4 v[176:179], v3, s[28:31], 0 offen")
    vq.issue("F", "    buffer_load_dwordx4 v[180:183], v3, s[28:31], 0 offen offset:16")
    vq.issue("F", "    buffer_load_dwordx4 v[184:187], v3, s[28:31], s44 offen")
    vq.issue("F", "    buffer_load_dwordx4 v[188:191], v3, s[28:31], s44 offen offset:16")
    for r in range(16):
        vq.issue("F", f"    buffer_load_dword v{192+r}, v4, s[32:35], {so(r>>2)} offen offset:{1280*(r&3)}")
    a("    s_movk_i32 s37, 6554")
    for j in range(5):
        a(f"""
    v_add_u32 v6, {64*j}, v0
    v_mul_u32_u24 v7, s37, v6
    v_lshrrev_b32 v7, 16, v7         ; prow
    v_mul_u32_u24 v8, 10, v7
    v_sub_u32 v8, v6, v8             ; c
    v_and_b32 v9, 0x13, v7
    v_and_b32 v10, 4, v7
    v_lshlrev_b32 v10, 1, v10
    v_and_b32 v11, 8, v7
    v_lshrrev_b32 v11, 1, v11
    v_or3_b32 v9, v9, v10, v11
    v_mul_u32_u24 v9, 0x500, v9
    v_lshl_add_u32 v9, v8, 4, v9
    v_add_u32 v{216+j}, s18, v9
""")
    a("""
    s_mul_i32 s37, s3, 25600
    s_mul_i32 s38, s3, 204800        ; 160w*1280
""")
    for grp in range(5):
        for j in range(5):
            a(f"    s_add_u32 m0, s37, {grp*5120+j*1024}")
            if j == 0:
                a(f"    s_add_u32 s39, s38, {grp*32*1280}")
            else:
                a("    s_nop 0")
            vq.issue("D", f"    buffer_load_dwordx4 v{216+j}, s[24:27], s39 offen lds")
    a("""
    v_and_b32 v1, 15, v0
    v_lshrrev_b32 v2, 4, v0
    s_lshl_b32 s37, s36, 5
    s_add_u32 s37, s37, s16          ; s0 + 32sh
    v_add_u32 v6, s37, v1
    v_mul_u32_u24 v6, 0x500, v6
    v_lshl_add_u32 v6, v2, 4, v6
    s_mul_i32 s38, s19, 640
    v_add_u32 v6, s38, v6
    v_add_u32 v7, 0x5000, v6
""")
    for ks in range(10):
        for i in range(2):
            b = 16 + 8 * ks + 4 * i
            vq.issue("O", f"    buffer_load_dwordx4 v[{b}:{b+3}], v{6+i}, s[20:23], 0 offen offset:{64*ks}")
    a("""
    v_lshrrev_b32 v8, 1, v2
    v_lshlrev_b32 v8, 4, v8          ; 16(kq>>1)
    v_and_b32 v9, 1, v2
    v_lshlrev_b32 v9, 2, v9          ; 4(kq&1)
    v_lshrrev_b32 v10, 2, v0
    v_and_b32 v10, 3, v10            ; r
    v_add3_u32 v8, v8, v9, v10
    s_mul_i32 s38, s19, 320
    v_add_u32 v8, s38, v8
    v_mul_u32_u24 v8, 160, v8
    v_and_b32 v9, 3, v0
    v_lshl_add_u32 v8, v9, 3, v8     ; A base
""")
    for r in range(40):
        a(f"    v_mov_b32 v{96+r}, 0")
    vq.wait("F")
    for r in range(16):
        grp, rr = r >> 3, r & 7
        p = (rr & 1) * 4 + (rr >> 1)
        dw = grp * 4 + (p >> 1)
        if p & 1:
            a(f"    v_and_b32 v208, s45, v{176+dw}")
            a(f"    v_and_b32 v209, s45, v{184+dw}")
        else:
            a(f"    v_lshlrev_b32 v208, 16, v{176+dw}")
            a(f"    v_lshlrev_b32 v209, 16, v{184+dw}")
        a(f"    v_lshlrev_b32 v210, 16, v{192+r}")
        a(f"    v_and_b32 v211, s45, v{192+r}")
        a(f"    v_mul_f32 v208, v208, v210")
        a(f"    v_mul_f32 v209, v209, v211")
        a(f"    v_cvt_pk_bf16_f32 v{192+r}, v208, v209")
        vq.issue("S", f"    buffer_store_dword v{192+r}, v5, s[40:43], {so(r>>1)} offen offset:{2560*(r&1)}")
    vq.wait("O")
    a("    s_barrier")

    def areads(ks):
        b = 136 + 20 * (ks & 1)
        for c5 in range(5):
            for hf in range(2):
                a(f"    ds_read_b64_tr_b16 v[{b+4*c5+2*hf}:{b+4*c5+2*hf+1}], v8 offset:{ks*5120+hf*1280+c5*32}")

    areads(0)
    for ks in range(10):
        if ks < 9:
            areads(ks + 1)
            a("    s_waitcnt lgkmcnt(10)")
        else:
            a("    s_waitcnt lgkmcnt(0)")
        b = 136 + 20 * (ks & 1)
        for c5 in range(5):
            for i in range(2):
                acc = 96 + 8 * c5 + 4 * i
                o = 16 + 8 * ks + 4 * i
                a(f"    v_mfma_f32_16x16x32_bf16 v[{acc}:{acc+3}], v[{b+4*c5}:{b+4*c5+3}], v[{o}:{o+3}], v[{acc}:{acc+3}]")
    a("""
    v_lshlrev_b32 v3, 4, v0
    s_mul_i32 s38, s36, 10240
    s_add_u32 s38, s38, 102400
    v_add_u32 v3, s38, v3
    s_cmp_eq_u32 s19, 0
    s_cbranch_scc1 K3_RED0
    s_nop 7
""")
    for t in range(10):
        a(f"    ds_write_b128 v3, v[{96+4*t}:{99+4*t}] offset:{1024*t}")
    a("""
    s_waitcnt lgkmcnt(0)
    s_barrier
    s_branch K3_END
""")
    a.label("K3_RED0")
    a("""
    v_add_u32 v6, s37, v1
    v_mul_u32_u24 v6, 0xa00, v6
    v_lshl_add_u32 v6, v2, 3, v6
    s_add_u32 s38, s18, 1280
    v_add_u32 v6, s38, v6
    v_add_u32 v7, 0xa000, v6
    s_barrier
""")
    for t in range(10):
        a(f"    ds_read_b128 v[{16+4*t}:{19+4*t}], v3 offset:{1024*t}")
    a("    s_waitcnt lgkmcnt(0)")
    for c5 in range(5):
        for i in range(2):
            t = 2 * c5 + i
            for r in range(4):
                a(f"    v_add_f32 v{96+4*t+r}, v{96+4*t+r}, v{16+4*t+r}")
            a(f"    v_cvt_pk_bf16_f32 v{60+2*t}, v{96+4*t}, v{97+4*t}")
            a(f"    v_cvt_pk_bf16_f32 v{61+2*t}, v{98+4*t}, v{99+4*t}")
            a(f"    buffer_store_dwordx2 v[{60+2*t}:{61+2*t}], v{6+i}, s[40:43], 0 offen offset:{32*c5}")
    a.label("K3_END")
    a("    s_endpgm")


DESC = """
.amdhsa_kernel k3_kernel
  .amdhsa_next_free_vgpr 224
  .amdhsa_next_free_sgpr 102
  .amdhsa_accum_offset 224
  .amdhsa_group_segment_fixed_size 0
  .amdhsa_kernarg_size 96
  .amdhsa_user_sgpr_count 2
  .amdhsa_user_sgpr_kernarg_segment_ptr 1
  .amdhsa_system_sgpr_workgroup_id_x 1
.end_amdhsa_kernel
"""
```

```python
import sys, os
sys.path.insert(0, os.path.dirname(os.path.abspath(__file__)))
from asmlib import Asm
import k1
HEADER = open("concat_heads__ssm_conv_h3__sliding_block__prompt.s.ref").read().split("; Override launch")[0]

def main(out):
    launches = []
    descs = []
    a = Asm()
    k1.gen_k1(a); launches.append("; @launch kernel=k1_kernel grid=(240,1,1) block=(512,1,1) lds=163840"); descs.append(k1.K1_DESC)
    try:
        import k2
        k2.gen_k2(a); launches.append(k2.LAUNCH); descs.append(k2.DESC)
    except ImportError:
        pass
    try:
        import k3
        k3.gen_k3(a); launches.append(k3.LAUNCH); descs.append(k3.DESC)
    except ImportError:
        pass
    body = a.finalize()
    txt = HEADER + "\n".join(launches) + "\n" + '.amdgcn_target "amdgcn-amd-amdhsa--gfx950"\n.text\n' + body
    txt += '.section .rodata,"a"\n'
    for d in descs:
        txt += ".p2align 6\n" + d.lstrip("\n")
    open(out, "w").write(txt)
    print("wrote", out, len(txt), "bytes")

if __name__ == "__main__":
    main(sys.argv[1] if len(sys.argv) > 1 else "concat_heads__ssm_conv_h3__sliding_block__prompt.s")
```

```python
import re

TRANS = ("v_exp_f32", "v_log_f32", "v_rcp_f32", "v_rsq_f32", "v_sqrt_f32", "v_sin_f32", "v_cos_f32")


def _regs(tok):
    tok = tok.strip()
    tok = tok.lstrip("-")
    m = re.match(r"abs\((.*)\)$", tok)
    if m:
        tok = m.group(1)
    m = re.match(r"([vsa])\[(\d+):(\d+)\]$", tok)
    if m:
        return [(m.group(1), i) for i in range(int(m.group(2)), int(m.group(3)) + 1)]
    m = re.match(r"([vsa])(\d+)$", tok)
    if m:
        return [(m.group(1), int(m.group(2)))]
    if tok == "vcc":
        return [("s", 106), ("s", 107)]
    if tok == "vcc_lo":
        return [("s", 106)]
    if tok == "vcc_hi":
        return [("s", 107)]
    if tok == "exec":
        return [("s", 126), ("s", 127)]
    if tok == "m0":
        return [("s", 124)]
    return []


class Inst:
    def __init__(self, text):
        self.text = text
        t = text.split(";")[0].strip()
        self.label = t.endswith(":")
        self.defs, self.uses = set(), set()
        self.srcc = set()
        self.srcab = set()
        self.kind = "other"
        self.passes = 0
        self.nop = 0
        if self.label or not t or t.startswith("."):
            self.kind = "meta"
            self.op = ""
            return
        parts = t.split(None, 1)
        op = parts[0]
        self.op = op
        rest = parts[1] if len(parts) > 1 else ""
        ops = [o.strip() for o in rest.split(",")] if rest else []
        ops2 = []
        for o in ops:
            ops2.append(o.split()[0] if o else o)
        mods = rest
        R = [_regs(o) for o in ops2]
        if op == "s_nop":
            self.kind = "nop"
            self.nop = int(ops2[0], 0) + 1
        elif op.startswith("v_mfma"):
            self.kind = "mfma"
            self.passes = 8 if "32x32" in op else 4
            self.defs = set(R[0])
            self.srcab = set(R[1]) | set(R[2])
            self.srcc = set(R[3])
            self.uses = self.srcab | self.srcc
        elif op.startswith("v_"):
            self.kind = "valu"
            if op.startswith("v_cmp"):
                self.defs = set(R[0])
                for r in R[1:]:
                    self.uses |= set(r)
            elif op.startswith("v_permlane") and "swap" in op:
                self.defs = set(R[0]) | set(R[1])
                self.uses = set(R[0]) | set(R[1])
            elif op in ("v_add_co_u32", "v_sub_co_u32", "v_addc_co_u32", "v_subb_co_u32"):
                self.defs = set(R[0]) | set(R[1])
                for r in R[2:]:
                    self.uses |= set(r)
            else:
                self.defs = set(R[0])
                for r in R[1:]:
                    self.uses |= set(r)
                if op.startswith("v_fmac") or op.startswith("v_mac") or op.startswith("v_writelane"):
                    self.uses |= set(R[0])
                if op.startswith("v_cndmask") and len(R) < 4:
                    self.uses |= {("s", 106), ("s", 107)}
        elif op.startswith("ds_"):
            self.kind = "ds"
            if op.startswith("ds_read") or op.startswith("ds_bpermute") or op.startswith("ds_permute") or op.startswith("ds_swizzle"):
                self.defs = set(R[0])
                for r in R[1:]:
                    self.uses |= set(r)
            else:
                for r in R:
                    self.uses |= set(r)
        elif op.startswith("buffer_") or op.startswith("global_"):
            self.kind = "vmem"
            islds = re.search(r"\blds\b", mods) is not None or "_lds_" in op
            self.lds = islds
            if "load" in op and not islds:
                self.defs = set(R[0])
                for r in R[1:]:
                    self.uses |= set(r)
            else:
                for r in R:
                    self.uses |= set(r)
                if islds:
                    self.uses |= {("s", 124)}
            self.wide_store = ("store" in op) and ("x4" in op or "x3" in op)
            self.store_data = set(R[0]) if ("store" in op and op.startswith("buffer_")) else (set(R[1]) if "store" in op else set())
        elif op.startswith("s_"):
            self.kind = "salu"
            if op.startswith("s_cmp") or op.startswith("s_cbranch") or op in ("s_branch", "s_barrier", "s_waitcnt", "s_endpgm", "s_setprio", "s_sleep"):
                for r in R:
                    self.uses |= set(r)
            else:
                if R:
                    self.defs = set(R[0])
                for r in R[1:]:
                    self.uses |= set(r)
                if "saveexec" in op:
                    self.defs |= {("s", 126), ("s", 127)}
        self.trans = op in TRANS


def required_gap(p, c):
    need = 0
    vdefs = {r for r in p.defs if r[0] in "va"}
    sdefs = {r for r in p.defs if r[0] == "s"}
    if p.kind == "valu":
        if c.kind == "mfma" and vdefs & c.uses:
            need = max(need, 2)
        if sdefs:
            if c.kind == "vmem" and sdefs & c.uses:
                need = max(need, 5)
            if c.kind in ("valu", "mfma") and sdefs & c.uses:
                need = max(need, 4 if c.op.startswith(("v_readlane", "v_writelane")) else 2)
            if c.kind == "salu" and sdefs & c.uses:
                need = max(need, 2)
        if c.kind == "valu" and c.op.startswith(("v_readfirstlane", "v_readlane")) and vdefs & c.uses:
            need = max(need, 1)
        if p.trans and c.kind == "valu" and not c.trans and vdefs & c.uses:
            need = max(need, 1)
        if c.kind == "valu" and (c.op.startswith("v_permlane") or "dpp" in c.text or "row_" in c.text or "quad_perm" in c.text) and vdefs & c.uses:
            need = max(need, 2)
    if p.kind == "mfma":
        big = 12 if p.passes == 8 else 8
        if c.kind == "mfma":
            if vdefs & c.srcab:
                need = max(need, big)
            if vdefs & c.srcc:
                if not (c.srcc == vdefs and c.passes == p.passes):
                    need = max(need, 10 if p.passes == 8 else 6)
            if (vdefs & c.defs) and not (vdefs & c.srcc):
                need = max(need, big)
        elif c.kind in ("valu", "vmem", "ds"):
            if vdefs & (c.uses | c.defs):
                need = max(need, big)
            if c.kind == "valu" and (p.srcc & c.defs):
                need = max(need, 7 if p.passes == 8 else 3)
    if p.kind == "salu" and ("s", 124) in p.defs:
        if c.kind == "vmem" and getattr(c, "lds", False):
            need = max(need, 1)
    if p.kind == "vmem" and getattr(p, "wide_store", False):
        if c.kind in ("valu", "mfma", "vmem", "ds") and (p.store_data & c.defs):
            need = max(need, 2)
    return need


class Asm:
    def __init__(self):
        self.lines = []

    def __call__(self, text):
        for l in text.split("\n"):
            l = l.rstrip()
            if l.strip():
                self.lines.append(l)

    def label(self, name):
        self.lines.append(name + ":")

    def finalize(self, window=24):
        insts = [Inst(l) for l in self.lines]
        out = []

        def dist_states(seq, i_from):
            n = 0
            for k in range(i_from + 1, len(seq)):
                x = seq[k]
                if x.kind == "meta":
                    continue
                n += x.nop if x.kind == "nop" else 1
            return n

        for c in insts:
            if c.kind in ("meta", "nop"):
                out.append(c)
                continue
            need_extra = 0
            n = 0
            for k in range(len(out) - 1, -1, -1):
                p = out[k]
                if p.kind == "meta":
                    continue
                g = required_gap(p, c)
                if g > n:
                    need_extra = max(need_extra, g - n)
                n += p.nop if p.kind == "nop" else 1
                if n > window:
                    break
            while need_extra > 0:
                t = min(need_extra, 16)
                out.append(Inst("    s_nop %d" % (t - 1)))
                need_extra -= t
            out.append(c)
        labels = {x.text.split(":")[0].strip(): i for i, x in enumerate(out) if x.label}
        problems = []
        for i, x in enumerate(out):
            if x.kind == "salu" and (x.op.startswith("s_cbranch") or x.op == "s_branch"):
                tgt = x.text.split(";")[0].split()[-1]
                if tgt not in labels:
                    continue
                j = labels[tgt]
                pre = [y for y in out[max(0, i - window):i + 1] if y.kind != "meta"]
                post = [y for y in out[j:j + window] if y.kind != "meta"]
                for b, c in enumerate(post):
                    if c.kind == "nop":
                        continue
                    n = sum((y.nop if y.kind == "nop" else 1) for y in post[:b])
                    for a in range(len(pre) - 1, -1, -1):
                        p = pre[a]
                        g = required_gap(p, c)
                        if g > n:
                            problems.append((p.text, c.text, g, n))
                        n += p.nop if p.kind == "nop" else 1
        for pr in problems:
            print("HAZARD across branch:", pr)
        if problems:
            raise SystemExit("fix branch hazards")
        return "\n".join(x.text for x in out) + "\n"


STAMP = False
TS_OFF = 0x1800000


def stamp(a, idx):
    if STAMP:
        a(f"    s_memrealtime s[{80+2*idx}:{81+2*idx}]")
        a("    s_waitcnt lgkmcnt(0)")


def stamp_flush(a, kidx, nst):
    if not STAMP:
        return
    a(f"""
    s_memrealtime s[{80+2*nst}:{81+2*nst}]
    s_load_dwordx2 s[72:73], s[0:1], 88
    s_waitcnt vmcnt(0) lgkmcnt(0)
    s_add_u32 s72, s72, 0x{TS_OFF + kidx*0x200000:x}
    s_addc_u32 s73, s73, 0
    s_mov_b32 s74, 0x200000
    s_mov_b32 s75, 0x20000
    s_lshl_b32 s76, s2, 4
    s_add_u32 s76, s76, s3
    s_lshl_b32 s76, s76, 6
    v_mov_b32 v0, s76
    s_mov_b64 exec, 1
""")
    for i in range(nst + 1):
        a(f"    v_mov_b32 v1, s{80+2*i}")
        a(f"    buffer_store_dword v1, v0, s[72:75], 0 offen offset:{4*i}")
```

```python
from asmlib import Asm, stamp, stamp_flush

QH, KH, VT, OO, XR0, XR1, ZT = 0x0, 0x280000, 0x500000, 0x780000, 0xA00000, 0xC80000, 0xF00000
WOP = 0x1180000
import math, struct
QSCALE = struct.unpack('<I', struct.pack('<f', (20 ** -0.5) * math.log2(math.e)))[0]
REG = 0x280000
NST = 10
NSLOT = 5
import os
DBG = os.environ.get('K1DBG', '')


def srd(a, d, lo, hi, size, add=0):
    if add:
        a(f"    s_add_u32 s{d}, s{lo}, 0x{add:x}")
        a(f"    s_addc_u32 s{d+1}, s{hi}, 0")
    else:
        a(f"    s_mov_b32 s{d}, s{lo}")
        a(f"    s_mov_b32 s{d+1}, s{hi}")
    a(f"    s_mov_b32 s{d+2}, 0x{size:x}")
    a(f"    s_mov_b32 s{d+3}, 0x20000")


class VQ:
    def __init__(self, a):
        self.a = a
        self.q = []

    def issue(self, tag, text):
        self.a(text)
        self.q.append(tag)

    def wait(self, tag):
        idx = max((i for i, t in enumerate(self.q) if t == tag), default=-1)
        if idx < 0:
            return
        n = len(self.q) - 1 - idx
        self.a(f"    s_waitcnt vmcnt({min(n, 63)})")
        if n <= 63:
            self.q = self.q[idx + 1:]


def gen_k1(a):
    a("""
.globl k1_kernel
.p2align 8
.type k1_kernel,@function
k1_kernel:
    s_cmp_ge_u32 s2, 240
    s_cbranch_scc1 K1_EXIT
    s_load_dwordx2 s[4:5], s[0:1], 48
    s_load_dwordx2 s[6:7], s[0:1], 56
    s_load_dwordx2 s[8:9], s[0:1], 88
    s_load_dwordx2 s[10:11], s[0:1], 8
    s_load_dwordx2 s[12:13], s[0:1], 16
    s_load_dwordx2 s[14:15], s[0:1], 24
    s_load_dwordx2 s[60:61], s[0:1], 32
    s_load_dwordx2 s[62:63], s[0:1], 0
    s_load_dwordx2 s[64:65], s[0:1], 64
    v_lshrrev_b32 v1, 6, v0
    v_and_b32 v0, 63, v0
    v_readfirstlane_b32 s3, v1
    s_and_b32 s16, s2, 7
    s_mul_i32 s16, s16, 30
    s_lshr_b32 s17, s2, 3
    s_add_u32 s16, s16, s17          ; L
    s_mul_i32 s17, s16, 1093
    s_lshr_b32 s17, s17, 16          ; sgroup
    s_mul_i32 s18, s17, 60
    s_sub_u32 s18, s16, s18          ; rem
    s_lshl_b32 s17, s17, 2
    s_and_b32 s16, s18, 3
    s_add_u32 s16, s16, s17          ; mt
    s_lshr_b32 s17, s18, 2           ; nt
    s_waitcnt lgkmcnt(0)
""")
    stamp(a, 0)
    a("""
    s_cmp_ge_u32 s3, 8
    s_cbranch_scc1 K1_PREP
    s_cmp_ge_u32 s3, 4
    s_cbranch_scc1 K1_HELPER
""")
    srd(a, 20, 4, 5, 2048 * 1280)
    srd(a, 24, 6, 7, 640 * 3840)
    a("""
    s_lshl_b32 s18, s2, 2
    s_add_u32 s18, s18, s3
    s_lshl_b32 s18, s18, 10
    v_lshlrev_b32 v1, 4, v0
    s_add_u32 s19, s18, 0xf0000
    s_add_u32 s28, s18, 0x1e0000
""")
    if 'pf' in DBG:
        a("""
    buffer_load_dwordx4 v[112:115], v1, s[20:23], s18 offen
    buffer_load_dwordx4 v[116:119], v1, s[24:27], s18 offen
    buffer_load_dwordx4 v[120:123], v1, s[20:23], s19 offen
    buffer_load_dwordx4 v[124:127], v1, s[24:27], s19 offen
    buffer_load_dwordx4 v[128:131], v1, s[20:23], s28 offen
    buffer_load_dwordx4 v[132:135], v1, s[24:27], s28 offen
""")
    if 'kv' in DBG:
        srd(a, 32, 10, 11, 2048 * 1280)
        srd(a, 36, 12, 13, 2048 * 1280)
        a("""
    buffer_load_dwordx4 v[136:139], v1, s[32:35], s18 offen
    buffer_load_dwordx4 v[140:143], v1, s[36:39], s18 offen
    buffer_load_dwordx4 v[144:147], v1, s[32:35], s19 offen
    buffer_load_dwordx4 v[148:151], v1, s[36:39], s19 offen
    buffer_load_dwordx4 v[152:155], v1, s[32:35], s28 offen
    buffer_load_dwordx4 v[156:159], v1, s[36:39], s28 offen
""")

    a("""
    s_lshr_b32 s18, s3, 1
    s_and_b32 s19, s3, 1
    v_and_b32 v1, 31, v0             ; l&31
    v_lshrrev_b32 v2, 5, v0          ; kh
    v_lshrrev_b32 v3, 1, v1
    v_and_b32 v3, 7, v3              ; f
    v_xor_b32 v3, v3, v2             ; kh ^ f
    v_lshlrev_b32 v3, 4, v3
    s_lshl_b32 s20, s18, 6
    v_add_u32 v4, s20, v1
    v_lshlrev_b32 v4, 7, v4          ; row*128
    v_add_u32 v4, v4, v3
    v_xor_b32 v5, 32, v4
    v_xor_b32 v6, 64, v4
    v_xor_b32 v7, 0x60, v4
    ; W addresses
    v_lshrrev_b32 v8, 4, v0          ; g
    v_lshrrev_b32 v9, 2, v0
    v_and_b32 v9, 3, v9              ; r
    v_and_b32 v10, 3, v0             ; c
    v_lshrrev_b32 v11, 1, v8
    v_lshlrev_b32 v11, 3, v11
    v_add_u32 v11, v11, v9           ; k_local
    v_lshlrev_b32 v11, 8, v11
    v_and_b32 v12, 1, v8
    v_lshlrev_b32 v12, 5, v12        ; 16*(g&1)*2
    v_lshlrev_b32 v10, 3, v10        ; 4c*2
    v_add3_u32 v11, v11, v12, v10
    v_add_u32 v11, 0x4000, v11
    s_lshl_b32 s20, s19, 1           ; seg j=0
    v_xor_b32 v12, s20, v9
    v_lshlrev_b32 v12, 6, v12
    v_add_u32 v8, v11, v12           ; W base j=0
    s_add_u32 s20, s20, 1
    v_xor_b32 v12, s20, v9
    v_lshlrev_b32 v12, 6, v12
    v_add_u32 v9, v11, v12           ; W base j=1
""")
    for i in range(64):
        a(f"    v_mov_b32 v{48+i}, 0")
    a("""
    v_mov_b32 v10, v4
    v_mov_b32 v11, v5
    v_mov_b32 v12, v6
    v_mov_b32 v13, v7
    v_mov_b32 v14, v8
    v_mov_b32 v15, v9
    s_mov_b32 s21, 0                 ; stage
    s_mov_b32 s22, 0
    s_cmp_ge_u32 s17, 10
    s_cbranch_scc1 K1_GEMM_V
""")

    def rd_list(ks, st):
        b = 16 + 16 * st
        if 'noread' in DBG:
            return []
        r = [f"    ds_read_b128 v[{b}:{b+3}], v{10+ks}",
             f"    ds_read_b64_tr_b16 v[{b+8}:{b+9}], v14 offset:{ks*4096}",
             f"    ds_read_b64_tr_b16 v[{b+10}:{b+11}], v14 offset:{ks*4096+1024}",
             f"    ds_read_b64_tr_b16 v[{b+12}:{b+13}], v15 offset:{ks*4096}",
             f"    ds_read_b64_tr_b16 v[{b+14}:{b+15}], v15 offset:{ks*4096+1024}",
             f"    ds_read_b128 v[{b+4}:{b+7}], v{10+ks} offset:4096"]
        return r

    def step(st, vmode, rds):
        b = 16 + 16 * st
        n = 0
        rds = list(rds)
        for i in range(2):
            for j in range(2):
                acc = 48 + 16 * (2 * i + j)
                xf = f"v[{b+4*i}:{b+4*i+3}]"
                wf = f"v[{b+8+4*j}:{b+8+4*j+3}]"
                if 'nomfma' not in DBG:
                    if vmode:
                        a(f"    v_mfma_f32_32x32x16_bf16 v[{acc}:{acc+15}], {xf}, {wf}, v[{acc}:{acc+15}]")
                    else:
                        a(f"    v_mfma_f32_32x32x16_bf16 v[{acc}:{acc+15}], {wf}, {xf}, v[{acc}:{acc+15}]")
                for _ in range(2):
                    if rds:
                        a(rds.pop(0))

    def mainloop(tag, vmode):
        a("    s_barrier")
        for r in rd_list(0, 0):
            a(r)
        a.label(f"K1_LOOP_{tag}")
        a("    s_waitcnt lgkmcnt(0)")
        step(0, vmode, rd_list(1, 1))
        a("    s_waitcnt lgkmcnt(0)")
        step(1, vmode, rd_list(2, 0))
        a("    s_waitcnt lgkmcnt(0)")
        step(0, vmode, rd_list(3, 1))
        a(f"""
    s_add_u32 s21, s21, 1
    s_add_u32 s22, s22, 0x8000
    s_cmp_eq_u32 s22, 0x{NSLOT*0x8000:x}
    s_cselect_b32 s22, 0, s22
    v_add_u32 v10, s22, v4
    v_add_u32 v11, s22, v5
    v_add_u32 v12, s22, v6
    v_add_u32 v14, s22, v8
    v_add_u32 v15, s22, v9
    s_cmp_eq_u32 s21, {NST}
    s_waitcnt lgkmcnt(0)
    s_cbranch_scc1 K1_LAST_{tag}
    s_barrier
    v_add_u32 v13, s22, v7
""")
        step(1, vmode, rd_list(0, 0))
        a(f"    s_branch K1_LOOP_{tag}")
        a.label(f"K1_LAST_{tag}")
        step(1, vmode, [])

    mainloop("QK", False)
    a(f"""
    s_cmp_ge_u32 s17, 5
    s_cselect_b32 s20, 0x{KH:x}, 0
    s_cselect_b32 s23, 5, 0
    s_sub_u32 s23, s17, s23
    s_add_u32 s28, s8, s20
    s_addc_u32 s29, s9, 0
    s_mov_b32 s30, 0x{REG:x}
    s_mov_b32 s31, 0x20000
    s_lshl_b32 s23, s23, 7
    s_lshl_b32 s24, s19, 6
    s_add_u32 s23, s23, s24          ; c0
    v_lshlrev_b32 v2, 2, v2          ; 4*hh
    v_add_u32 v2, s23, v2            ; colbase
    s_lshl_b32 s24, s16, 7
    s_lshl_b32 s25, s18, 6
    s_add_u32 s24, s24, s25          ; s0
    v_add_u32 v3, s24, v1            ; s
    v_mul_u32_u24 v3, 40, v3         ; s*40
    s_mov_b32 s25, 52429
    s_mov_b32 s26, 81880
    s_cmp_ge_u32 s17, 5
    s_cselect_b32 s27, 1.0, 0x{QSCALE:08x}
""")
    for j in range(2):
        for g in range(4):
            a(f"    v_add_u32 v4, {32*j+8*g}, v2")
            a("    v_mul_u32_u24 v5, s25, v4")
            a("    v_lshrrev_b32 v5, 20, v5")
            a("    v_lshl_add_u32 v4, v4, 1, v3")
            a(f"    v_mad_u32_u24 v4, v5, s26, v4")
            for i in range(2):
                acc = 48 + 16 * (2 * i + j) + 4 * g
                d = 16 + 2 * ((2 * g + i) % 8)
                for q in range(4):
                    a(f"    v_mul_f32 v{acc+q}, s27, v{acc+q}")
                a(f"    v_cvt_pk_bf16_f32 v{d}, v{acc}, v{acc+1}")
                a(f"    v_cvt_pk_bf16_f32 v{d+1}, v{acc+2}, v{acc+3}")
                a(f"    buffer_store_dwordx2 v[{d}:{d+1}], v4, s[28:31], 0 offen offset:{1280*i}")
    a("    s_branch K1_END")

    a.label("K1_GEMM_V")
    mainloop("V", True)
    a(f"""
    s_add_u32 s28, s8, 0x{VT:x}
    s_addc_u32 s29, s9, 0
    s_mov_b32 s30, 0x{REG:x}
    s_mov_b32 s31, 0x20000
    s_sub_u32 s23, s17, 10
    s_lshl_b32 s23, s23, 7
    s_lshl_b32 s24, s19, 6
    s_add_u32 s23, s23, s24          ; c0
    v_add_u32 v3, s23, v1            ; col
    v_lshlrev_b32 v3, 12, v3         ; col*4096
    s_lshl_b32 s24, s16, 7
    s_lshl_b32 s25, s18, 6
    s_add_u32 s24, s24, s25          ; s0
    s_lshl_b32 s24, s24, 1
    v_lshlrev_b32 v2, 4, v2          ; 8hh*2
    v_add3_u32 v3, v3, v2, s24
    v_add_u32 v4, 0x20000, v3        ; j=1
""")
    n = 0
    for j in range(2):
        for i in range(2):
            for G in range(2):
                acc = 48 + 16 * (2 * i + j) + 8 * G
                d = 16 + 4 * (n % 8)
                n += 1
                for q in range(4):
                    a(f"    v_cvt_pk_bf16_f32 v{d+q}, v{acc+2*q}, v{acc+2*q+1}")
                a(f"    buffer_store_dwordx4 v[{d}:{d+3}], v{3+j}, s[28:31], 0 offen offset:{64*i+32*G}")
    a("    s_branch K1_END")

    a.label("K1_HELPER")
    srd(a, 20, 4, 5, 2048 * 1280)
    srd(a, 24, 6, 7, 640 * 3840)
    a("""
    s_sub_u32 s18, s3, 4             ; hw
    v_lshrrev_b32 v1, 3, v0          ; lane>>3
    v_and_b32 v2, 7, v0              ; slot
    v_lshrrev_b32 v3, 4, v0          ; lane>>4
    s_lshl_b32 s19, s16, 7
    s_lshl_b32 s28, s18, 5
    s_add_u32 s19, s19, s28
    v_add_u32 v4, s19, v1            ; row (j=0)
    v_mul_u32_u24 v4, 0x500, v4      ; *1280
    v_xor_b32 v5, v2, v3
    v_xor_b32 v6, 4, v5
    v_lshl_add_u32 v10, v5, 4, v4                 ; j=0
    v_lshl_add_u32 v11, v6, 4, v4
    v_add_u32 v11, 0x2400, v11                    ; j=1: +8*1280-1024
    v_add_u32 v12, 0x4800, v10                    ; j=2: +16*1280-2048
    v_add_u32 v13, 0x4800, v11                    ; j=3
    ; W
    s_lshl_b32 s28, s18, 4           ; hw*16
    v_add_u32 v4, s28, v3            ; krow j=0
    v_mul_u32_u24 v4, 0xf00, v4      ; *3840
    v_and_b32 v5, 15, v0
    v_lshlrev_b32 v6, 2, v3
    v_xor_b32 v5, v5, v6
    v_lshl_add_u32 v4, v5, 4, v4
    s_lshl_b32 s28, s17, 8           ; nt*256
    v_add_u32 v14, s28, v4                        ; j=0
    v_add_u32 v15, 0x3800, v14                    ; +4*3840-1024
    v_add_u32 v16, 0x7000, v14
    v_add_u32 v17, 0xa800, v14
    s_lshl_b32 s19, s18, 12          ; hw*4096
""")

    def dma(vq, st):
        slot = st % NSLOT
        if 'nodma' in DBG:
            return
        a(f"    s_add_u32 m0, s19, 0x{slot*0x8000:x}")
        a(f"    s_mov_b32 s29, {st*128}")
        for j in range(4):
            vq.issue(f"D{st}", f"    buffer_load_dwordx4 v{10+j}, s[20:23], s29 offen offset:{1024*j} lds")
        a(f"    s_add_u32 m0, s19, 0x{slot*0x8000+0x4000:x}")
        a(f"    s_mov_b32 s29, {st*245760}")
        for j in range(4):
            vq.issue(f"D{st}", f"    buffer_load_dwordx4 v{14+j}, s[24:27], s29 offen offset:{1024*j} lds")

    vq = VQ(a)
    dma(vq, 0)
    dma(vq, 1)
    dma(vq, 2)
    sched = {0: [3, 4]}
    for i in range(1, 6):
        sched[i] = [i + 4]
    for s in range(NST):
        vq.wait(f"D{s}")
        a("    s_barrier")
        if s < 9:
            stamp(a, 1 + s)
        for st in sched.get(s, []):
            dma(vq, st)
    a("    s_branch K1_END")

    a.label("K1_PREP")
    srd(a, 68, 60, 61, 640 * 4096)
    srd(a, 72, 62, 63, 2048 * 1280)
    a("""
    s_sub_u32 s18, s3, 8             ; pw
    v_lshlrev_b32 v18, 4, v0
    s_lshl_b32 s57, s2, 2
    s_add_u32 s57, s57, s18
    s_lshl_b32 s57, s57, 10          ; gid*1024
    s_add_u32 s58, s57, 0xf0000
    s_add_u32 s59, s57, 0x1e0000
    s_mul_i32 s28, s2, 3
    s_add_u32 s28, s28, s18
    s_cmp_eq_u32 s18, 3
    s_cbranch_scc1 K1_P_W3
    s_cmp_ge_u32 s28, 640
    s_cbranch_scc1 K1_P_NONE
""")
    KR, VR, SK, W, KL, KHI, XL, XH, PK = 32, 52, 72, 76, 84, 88, 92, 110, 128

    def latepf():
        for j in range(3):
            a(f"    buffer_load_dwordx4 v[160:163], v18, s[68:71], s{57+j} offen")
            a(f"    buffer_load_dwordx4 v[164:167], v18, s[72:75], s{57+j} offen")

    srd(a, 32, 10, 11, 2048 * 1280)
    srd(a, 36, 12, 13, 2048 * 1280)
    srd(a, 40, 14, 15, 640 * 8)
    srd(a, 44, 8, 9, 2 * REG, XR0)
    a("""
    s_mul_i32 s30, s28, 6554
    s_lshr_b32 s30, s30, 16          ; sg
    s_mul_i32 s31, s30, 10
    s_sub_u32 s31, s28, s31          ; cg
    s_lshl_b32 s30, s30, 5           ; sg*32
    s_lshl_b32 s31, s31, 6           ; cg*64
    v_and_b32 v20, 31, v0            ; cp
    v_lshlrev_b32 v20, 1, v20
    v_add_u32 v20, s31, v20          ; ch
    v_lshrrev_b32 v21, 5, v0
    v_lshlrev_b32 v21, 4, v21
    v_add_u32 v21, s30, v21          ; s0
    v_mul_u32_u24 v22, 0x500, v21
    v_lshl_add_u32 v22, v20, 1, v22  ; vpos
    v_subrev_u32 v23, 0x1400, v22
    v_lshlrev_b32 v24, 3, v20
    v_lshlrev_b32 v25, 12, v20       ; ch*4096
    v_lshlrev_b32 v21, 1, v21
    v_sub_u32 v25, v25, v21
    v_add_u32 v25, 0xfe0, v25
    s_mov_b32 s50, 5120
    s_mov_b32 s51, 10240
    s_mov_b32 s52, 15360
    s_mov_b32 s53, 4096
    s_mov_b32 s54, 0x280000
    s_mov_b32 s55, 0x281000
    s_mov_b32 s56, 0xffff0000
""")
    so = ["0", "s50", "s51", "s52"]
    pl = [f"    buffer_load_dwordx4 v[{SK}:{SK+3}], v24, s[40:43], 0 offen"]
    for r in range(4):
        pl.append(f"    buffer_load_dword v{KR+r}, v23, s[32:35], 0 offen offset:{1280*r}")
    pl.append(f"    buffer_load_dword v{VR}, v23, s[36:39], 0 offen offset:3840")
    for r in range(16):
        pl.append(f"    buffer_load_dword v{KR+4+r}, v22, s[32:35], {so[r>>2]} offen offset:{1280*(r&3)}")
        pl.append(f"    buffer_load_dword v{VR+1+r}, v22, s[36:39], {so[r>>2]} offen offset:{1280*(r&3)}")
    ops = []
    for c2 in range(2):
        for q in range(2):
            ops.append(f"    v_lshlrev_b32 v{W+4*c2+2*q}, 16, v{SK+2*c2+q}")
            ops.append(f"    v_and_b32 v{W+4*c2+2*q+1}, s56, v{SK+2*c2+q}")
    for r in range(3):
        ops.append(f"    v_lshlrev_b32 v{KL+(r&3)}, 16, v{KR+r}")
        ops.append(f"    v_and_b32 v{KHI+(r&3)}, s56, v{KR+r}")
    for r in range(17):
        rr = r + 3
        ops.append(f"    v_lshlrev_b32 v{KL+(rr&3)}, 16, v{KR+rr}")
        ops.append(f"    v_and_b32 v{KHI+(rr&3)}, s56, v{KR+rr}")
        for (kb, xb, wb) in ((KL, XL, W), (KHI, XH, W + 4)):
            ops.append(f"    v_mul_f32 v{xb+r}, v{kb+(rr&3)}, v{wb}")
            ops.append(f"    v_fmac_f32 v{xb+r}, v{kb+((rr-1)&3)}, v{wb+1}")
            ops.append(f"    v_fmac_f32 v{xb+r}, v{kb+((rr-2)&3)}, v{wb+2}")
            ops.append(f"    v_fmac_f32 v{xb+r}, v{kb+((rr-3)&3)}, v{wb+3}")
        ops.append(f"    v_lshlrev_b32 v26, 16, v{VR+r}")
        ops.append(f"    v_and_b32 v27, s56, v{VR+r}")
        ops.append(f"    v_mul_f32 v{XL+r}, v{XL+r}, v26")
        ops.append(f"    v_mul_f32 v{XH+r}, v{XH+r}, v27")
    so2 = {(0, 0): "0", (1, 0): "s53", (0, 1): "s54", (1, 1): "s55"}
    for c2, xb in enumerate((XL, XH)):
        for e in range(2):
            p = PK + 16 * c2 + 8 * e
            for q in range(8):
                t0 = 14 + e - 2 * q
                ops.append(f"    v_cvt_pk_bf16_f32 v{p+q}, v{xb+t0+1}, v{xb+t0}")
            for hf in range(2):
                ops.append(f"    buffer_store_dwordx4 v[{p+4*hf}:{p+4*hf+3}], v25, s[44:47], {so2[(c2,e)]} offen offset:{16*hf}")
    PB = int(os.environ.get('K1PB', 5))
    PL = int(os.environ.get('K1PL', 0))
    LPF = int(os.environ.get('K1LPF', 3))
    nch = 9 - PB
    per = (len(ops) + nch - 1) // nch
    for s_ in range(NST):
        a("    s_barrier")
        if s_ == PL:
            for t in pl:
                a(t)
        if s_ == PB:
            a("    s_waitcnt vmcnt(0)")
        if PB <= s_ < PB + nch:
            for o in ops[(s_ - PB) * per:(s_ - PB + 1) * per]:
                a(o)
        if s_ == LPF:
            latepf()
    a("    s_branch K1_END")

    a.label("K1_P_W3")
    a("    s_cmp_ge_u32 s2, 160")
    a("    s_cbranch_scc1 K1_P_NONE")
    srd(a, 32, 64, 65, 640 * 1280)
    srd(a, 36, 8, 9, 640 * 1280, WOP)
    a("""
    s_lshl_b32 s30, s2, 2            ; k0 = 4*wg
    s_and_b32 s31, s30, 0xfffffff3
    s_and_b32 s50, s30, 4
    s_lshl_b32 s50, s50, 1
    s_or_b32 s31, s31, s50
    s_and_b32 s50, s30, 8
    s_lshr_b32 s50, s50, 1
    s_or_b32 s31, s31, s50           ; perm(k0)
    s_mul_i32 s30, s30, 1280
    s_mul_i32 s31, s31, 160
    s_movk_i32 s50, 820
    s_movk_i32 s51, 6554
    s_mov_b32 s52, 102400
""")
    for j in range(5):
        a(f"""
    v_add_u32 v20, {64*j}, v0
    v_mul_u32_u24 v21, s50, v20
    v_lshrrev_b32 v21, 16, v21       ; row
    v_mul_u32_u24 v22, 80, v21
    v_sub_u32 v22, v20, v22          ; c
    v_mul_u32_u24 v23, s51, v22
    v_lshrrev_b32 v23, 16, v23       ; slab
    v_mul_u32_u24 v24, 10, v23
    v_sub_u32 v24, v22, v24          ; cc
    v_mul_u32_u24 v25, 0x500, v21
    v_lshl_add_u32 v30, v22, 4, v25              ; src
    buffer_load_dwordx4 v[{128+4*j}:{131+4*j}], v30, s[32:35], s30 offen
    v_mul_u32_u24 v25, 160, v21
    v_lshl_add_u32 v25, v24, 4, v25
    v_mad_u32_u24 v{100+j}, v23, s52, v25        ; dst
""")
    for s_ in range(NST):
        a("    s_barrier")
        if s_ == 4:
            a("    s_waitcnt vmcnt(0)")
            for j in range(5):
                a(f"    buffer_store_dwordx4 v[{128+4*j}:{131+4*j}], v{100+j}, s[36:39], s31 offen")
        if s_ == LPF:
            latepf()
    a("    s_branch K1_END")
    a.label("K1_P_NONE")
    for s_ in range(NST):
        a("    s_barrier")
        if s_ == LPF:
            latepf()
    a.label("K1_END")
    stamp_flush(a, 0, 10)
    a.label("K1_EXIT")
    a("    s_endpgm")


K1_DESC = """
.amdhsa_kernel k1_kernel
  .amdhsa_next_free_vgpr 168
  .amdhsa_next_free_sgpr 102
  .amdhsa_accum_offset 168
  .amdhsa_group_segment_fixed_size 0
  .amdhsa_kernarg_size 96
  .amdhsa_user_sgpr_count 2
  .amdhsa_user_sgpr_kernarg_segment_ptr 1
  .amdhsa_system_sgpr_workgroup_id_x 1
.end_amdhsa_kernel
"""
```

```python
from asmlib import Asm, stamp, stamp_flush
from k1 import QH, KH, VT, OO, XR0, XR1, ZT, REG, srd
import math

LDS = 35776
LAUNCH = f"; @launch kernel=k2_kernel grid=(1152,1,1) block=(256,1,1) lds={LDS}"
PL0, PL1, PL2, VTL, ONES = 0, 6144, 12288, 18432, 34816
HCS, XC0, XCS = 4416, 17664, 5152


def gen_k2(a):
    a("""
.globl k2_kernel
.p2align 8
.type k2_kernel,@function
k2_kernel:
    s_cmp_ge_u32 s2, 1152
    s_cbranch_scc1 K2_EXIT
    s_load_dwordx2 s[4:5], s[0:1], 88
    s_load_dwordx2 s[6:7], s[0:1], 32
    s_load_dwordx2 s[8:9], s[0:1], 40
    v_lshrrev_b32 v1, 6, v0
    v_and_b32 v0, 63, v0
    v_readfirstlane_b32 s3, v1
""")
    stamp(a, 0)
    a("""
    s_cmp_ge_u32 s2, 512
    s_cbranch_scc1 K2_CONV_B
    s_setprio 2
    s_mov_b32 s17, s2                ; idx 0..511
    s_and_b32 s16, s17, 31
    s_lshr_b32 s17, s17, 5           ; qc
    s_lshl_b32 s18, s17, 7           ; q0
    s_sub_u32 s19, s18, 256
    s_waitcnt lgkmcnt(0)
""")
    srd(a, 20, 4, 5, REG, QH)
    srd(a, 24, 4, 5, REG, KH)
    srd(a, 28, 4, 5, REG, VT)
    srd(a, 32, 4, 5, REG, OO)
    a("""
    s_mul_i32 s36, s16, 81920        ; h*2048*40
    v_add_u32 v2, s19, v0
""")
    for i in range(5):
        if i == 4:
            a("    s_cmp_ge_u32 s3, 2")
            a("    s_cbranch_scc1 K2A_KDONE")
        a(f"""
    s_add_u32 s37, s3, {4*i}          ; t
    s_mul_i32 s38, s37, 43
    s_lshr_b32 s38, s38, 8           ; p
    s_mul_i32 s39, s38, 6
    s_sub_u32 s39, s37, s39          ; j
    s_lshl_b32 s39, s39, 6
    s_lshl_b32 s38, s38, 4
    s_add_u32 s38, s38, s36
    s_lshl_b32 m0, s37, 10
    v_add_u32 v3, s39, v2
    v_max_i32 v3, 0, v3
    v_mul_u32_u24 v3, 40, v3
    buffer_load_dwordx4 v3, s[24:27], s38 offen lds
""")
    a.label("K2A_KDONE")
    a("""
    s_mul_i32 s36, s16, 81920        ; h*20*4096
    s_movk_i32 s40, 1338
""")
    for i in range(4):
        a(f"""
    s_lshl_b32 s37, s3, 2
    s_add_u32 s37, s37, {i}          ; t
    s_lshl_b32 s38, s37, 6
    v_add_u32 v3, s38, v0            ; ci
    v_mul_u32_u24 v4, s40, v3
    v_lshrrev_b32 v4, 16, v4         ; row
    v_mul_u32_u24 v5, 49, v4
    v_sub_u32 v5, v3, v5             ; pos
    v_min_u32 v5, 47, v5
    v_min_u32 v4, 19, v4
    v_lshl_add_u32 v5, v5, 3, s19    ; key0
    v_max_i32 v5, 0, v5
    v_lshlrev_b32 v5, 1, v5
    v_lshl_add_u32 v5, v4, 12, v5
    s_lshl_b32 s38, s37, 10
    s_add_u32 m0, s38, {VTL}
    buffer_load_dwordx4 v5, s[28:31], s36 offen lds
""")
    QF, KF, SB, OA, VF = 16, 24, 48, 96, 112
    a(f"""
    v_mov_b32 v8, 0x3f803f80
    v_mov_b32 v9, v8
    v_mov_b32 v10, v8
    v_mov_b32 v11, v8
    v_min_u32 v3, 59, v0
    v_lshlrev_b32 v3, 4, v3
    ds_write_b128 v3, v[8:11] offset:{ONES}
    v_and_b32 v1, 31, v0             ; q / key / d
    v_lshrrev_b32 v2, 5, v0
    s_lshl_b32 s37, s3, 5            ; 32w
    s_add_u32 s38, s18, s37          ; qw
    s_lshl_b32 s39, s16, 11
    s_add_u32 s39, s39, s38          ; h*2048 + qw
    v_add_u32 v3, s39, v1
    v_mul_u32_u24 v3, 40, v3
    v_lshl_add_u32 v3, v2, 4, v3
    v_cmp_eq_u32 vcc, 0, v2
    v_mov_b32 v5, 0x7fffffff
    v_cndmask_b32 v4, v5, v3, vcc
    buffer_load_dwordx4 v[{QF}:{QF+3}], v3, s[20:23], 0 offen
    buffer_load_dwordx2 v[{QF+4}:{QF+5}], v4, s[20:23], 0 offen offset:32
    v_mov_b32 v{QF+6}, 0
    v_mov_b32 v{QF+7}, 0
    v_mov_b32 v{KF+6}, 0
    v_mov_b32 v{KF+7}, 0
    v_mov_b32 v{KF+14}, 0
    v_mov_b32 v{KF+15}, 0
    v_mov_b32 v{KF+22}, 0
    v_mov_b32 v{KF+23}, 0
    v_add_u32 v5, s37, v1            ; 32w + key
    v_lshlrev_b32 v5, 4, v5
    v_mul_u32_u24 v6, {PL1}, v2
    v_add_u32 v6, v6, v5             ; vK0
    v_add_u32 v7, {PL2}, v5          ; vK2
    v_mul_u32_u24 v8, 784, v1
    v_add_u32 v8, {VTL}, v8
    v_mov_b32 v9, {ONES+64}
    v_mov_b32 v10, {ONES+192}
    v_cmp_le_u32 vcc, 28, v1
    v_cndmask_b32 v9, v9, v10, vcc
    v_cmp_le_u32 vcc, 20, v1
    v_cndmask_b32 v8, v8, v9, vcc
    v_lshlrev_b32 v9, 4, v2          ; 8hh*2
    s_lshl_b32 s39, s3, 6
    v_add3_u32 v8, v8, v9, s39       ; vV
    v_lshlrev_b32 v9, 2, v2
    v_sub_u32 v9, v1, v9
""")
    for r in range(16):
        a(f"    v_cmp_le_i32 s[{40+2*r}:{41+2*r}], {8*(r>>2)+(r&3)}, v9")
    for r in range(16):
        a(f"    v_mov_b32 v{OA+r}, 0")
    a("""
    v_mov_b32 v10, 0xff800000
    v_mov_b32 v11, 0xf149f2ca
    s_lshr_b32 s39, s38, 5
    s_sub_u32 s39, 8, s39
    s_waitcnt vmcnt(0) lgkmcnt(0)
    s_barrier
""")
    stamp(a, 1)

    def kreads(g):
        for j in range(3):
            kb = 3 * g + j
            b = KF + 8 * j
            a(f"    ds_read_b128 v[{b}:{b+3}], v6 offset:{kb*512}")
            a(f"    ds_read_b64 v[{b+4}:{b+5}], v7 offset:{kb*512}")

    def vreads(kb):
        b = VF + 8 * (kb & 1)
        a(f"    ds_read_b128 v[{b}:{b+3}], v8 offset:{kb*64}")
        a(f"    ds_read_b128 v[{b+4}:{b+7}], v8 offset:{kb*64+32}")

    kreads(0)
    for g in range(3):
        for j in range(3):
            a(f"    s_waitcnt lgkmcnt({4-2*j})")
            b = KF + 8 * j
            sb = SB + 16 * j
            a(f"    v_mfma_f32_32x32x16_bf16 v[{sb}:{sb+15}], v[{b}:{b+3}], v[{QF}:{QF+3}], 0")
            a(f"    v_mfma_f32_32x32x16_bf16 v[{sb}:{sb+15}], v[{b+4}:{b+7}], v[{QF+4}:{QF+7}], v[{sb}:{sb+15}]")
        vreads(3 * g)
        vreads(3 * g + 1)
        if g < 2 or True:
            a(f"    s_cmp_le_i32 s39, {3*g}")
            a(f"    s_cbranch_scc1 K2A_NOFIX{g}")
            a("    s_nop 7")
            a("    s_nop 7")
            for j in range(3):
                kb = 3 * g + j
                if kb == 8:
                    continue
                if j:
                    a(f"    s_cmp_le_i32 s39, {kb}")
                    a(f"    s_cbranch_scc1 K2A_NOFIX{g}")
                for r in range(16):
                    a(f"    v_mov_b32 v{SB+16*j+r}, v10")
            a.label(f"K2A_NOFIX{g}")
            a("    s_nop 7")
            a("    s_nop 3")
        if g == 0:
            for r in range(16):
                a(f"    v_cndmask_b32 v{SB+r}, v{SB+r}, v10, s[{40+2*r}:{41+2*r}]")
        if g == 2:
            for r in range(16):
                a(f"    v_cndmask_b32 v{SB+32+r}, v10, v{SB+32+r}, s[{40+2*r}:{41+2*r}]")
        a(f"    v_max3_f32 v12, v{SB}, v{SB+1}, v11")
        a(f"    v_max3_f32 v13, v{SB+2}, v{SB+3}, v{SB+4}")
        i = 5
        tog = 0
        while i < 47:
            d = 12 + tog
            a(f"    v_max3_f32 v{d}, v{d}, v{SB+i}, v{SB+i+1}")
            i += 2
            tog ^= 1
        a(f"    v_max3_f32 v12, v12, v13, v{SB+47}")
        a("""
    v_mov_b32 v13, v12
    v_permlane32_swap_b32 v12, v13
    v_max_f32 v12, v12, v13
""")
        if g > 0:
            a("    v_sub_f32 v14, v11, v12")
            a("    v_exp_f32 v14, v14")
        a("    v_mov_b32 v11, v12")
        if g > 0:
            for r in range(13):
                a(f"    v_mul_f32 v{OA+r}, v{OA+r}, v14")
        for j in range(3):
            kb = 3 * g + j
            sb = SB + 16 * j
            for r in range(16):
                a(f"    v_sub_f32 v{sb+r}, v{sb+r}, v11")
            for r in range(16):
                a(f"    v_exp_f32 v{sb+r}, v{sb+r}")
            for q in range(8):
                a(f"    v_cvt_pk_bf16_f32 v{sb+q}, v{sb+2*q}, v{sb+2*q+1}")
            if j == 0:
                a("    s_waitcnt lgkmcnt(2)")
            else:
                a("    s_waitcnt lgkmcnt(2)" if j == 1 else ("    s_waitcnt lgkmcnt(6)" if g < 2 else "    s_waitcnt lgkmcnt(0)"))
            b = VF + 8 * (kb & 1)
            a(f"    v_mfma_f32_32x32x16_bf16 v[{OA}:{OA+15}], v[{b}:{b+3}], v[{sb}:{sb+3}], v[{OA}:{OA+15}]")
            a(f"    v_mfma_f32_32x32x16_bf16 v[{OA}:{OA+15}], v[{b+4}:{b+7}], v[{sb+4}:{sb+7}], v[{OA}:{OA+15}]")
            if j == 0:
                vreads(kb + 2)
            if j == 1 and g < 2:
                kreads(g + 1)
    stamp(a, 2)
    a(f"""
    v_add_u32 v3, s38, v1
    v_lshrrev_b32 v4, 4, v3
    v_mul_u32_u24 v4, 0x5000, v4     ; (s>>4)*20480
    v_and_b32 v3, 15, v3
    v_lshl_add_u32 v3, v3, 4, v4     ; + (s&15)*16
    s_mul_i32 s39, s16, 20
    v_lshlrev_b32 v4, 2, v2
    v_add_u32 v4, s39, v4            ; k0 = h*20 + 4hh
""")
    for g in range(3):
        a(f"""
    v_add_u32 v5, {8*g}, v4
    v_lshrrev_b32 v6, 3, v5
    v_lshlrev_b32 v6, 8, v6          ; (k>>3)*256 == (k>>5)*1024 + ((k>>3)&3)*256
    v_and_b32 v5, 7, v5
    v_lshl_add_u32 v5, v5, 1, v6
    v_add_u32 v{12+g}, v3, v5
""")
    a(f"""
    v_cmp_eq_u32 vcc, 0, v2
    v_mov_b32 v5, 0x7fffffff
    v_cndmask_b32 v14, v5, v14, vcc
    v_rcp_f32 v11, v{OA+12}
""")
    for r in range(12):
        a(f"    v_mul_f32 v{OA+r}, v{OA+r}, v11")
    for g in range(3):
        a(f"    v_cvt_pk_bf16_f32 v{16+2*g}, v{OA+4*g}, v{OA+1+4*g}")
        a(f"    v_cvt_pk_bf16_f32 v{17+2*g}, v{OA+2+4*g}, v{OA+3+4*g}")
        a(f"    buffer_store_dwordx2 v[{16+2*g}:{17+2*g}], v{12+g}, s[32:35], 0 offen")
    a("    s_branch K2_END")

    a.label("K2_CONV_B")
    a("    s_sub_u32 s16, s2, 512")
    a(f"""
    s_lshl_b32 s17, s16, 12          ; ch*4096
    s_lshr_b32 s18, s16, 1
    s_lshl_b32 s18, s18, 2
    s_waitcnt lgkmcnt(0)
    s_load_dword s19, s[8:9], s18
    s_add_u32 s20, s6, s17
    s_addc_u32 s21, s7, 0
    s_mov_b32 s22, 0x1000
    s_mov_b32 s23, 0x20000
    s_and_b32 s36, s3, 1             ; e
    s_mul_i32 s37, s36, 0x{REG:x}
    s_add_u32 s37, s37, s17
    s_add_u32 s37, s37, 0x{XR0:x}
    s_add_u32 s24, s4, s37
    s_addc_u32 s25, s5, 0
    s_mov_b32 s26, 0x1000
    s_mov_b32 s27, 0x20000
    s_add_u32 s37, s17, 0x{ZT:x}
    s_add_u32 s28, s4, s37
    s_addc_u32 s29, s5, 0
    s_mov_b32 s30, 0x1000
    s_mov_b32 s31, 0x20000
    ; h copy c = w
    s_mul_i32 s37, s3, {HCS}
    s_mov_b32 m0, s37
    s_sub_u32 s38, s3, 16
    v_add_u32 v2, s38, v0
    v_lshlrev_b32 v2, 2, v2
    buffer_load_dword v2, s[20:23], 0 offen lds
    s_add_u32 m0, s37, 256
    s_lshl_b32 s38, s3, 2
    s_add_u32 s38, s38, 192
    v_lshlrev_b32 v3, 4, v0
    v_add_u32 v2, s38, v3
    buffer_load_dwordx4 v2, s[20:23], 0 offen lds
    buffer_load_dwordx4 v2, s[20:23], 0 offen offset:1024 lds
    buffer_load_dwordx4 v2, s[20:23], 0 offen offset:2048 lds
    buffer_load_dwordx4 v2, s[20:23], 0 offen offset:3072 lds
    ; x copy e
    s_lshr_b32 s38, s3, 1
    s_mul_i32 s38, s38, 3072
    s_mul_i32 s37, s36, {XCS}
    s_add_u32 s37, s37, s38
    s_add_u32 m0, s37, {XC0}
    v_add_u32 v2, s38, v3
    buffer_load_dwordx4 v2, s[24:27], 0 offen lds
    buffer_load_dwordx4 v2, s[24:27], 0 offen offset:1024 lds
    s_cmp_ge_u32 s3, 2
    s_cbranch_scc1 K2C_XDONE
    buffer_load_dwordx4 v2, s[24:27], 0 offen offset:2048 lds
""")
    a.label("K2C_XDONE")
    a(f"""
    v_and_b32 v1, 15, v0             ; m / n
    v_lshrrev_b32 v2, 4, v0
    v_add_u32 v4, 1, v1
    v_and_b32 v5, 3, v4              ; c'
    v_lshrrev_b32 v4, 2, v4
    v_add_u32 v4, v4, v2
    v_lshlrev_b32 v4, 4, v4
    v_mul_u32_u24 v5, {HCS}, v5
    s_lshl_b32 s37, s3, 7            ; 128w
    v_add3_u32 v6, v4, v5, s37       ; A addr
    v_and_b32 v4, 1, v1
    v_mul_u32_u24 v4, {XCS}, v4
    v_lshrrev_b32 v5, 1, v1
    v_lshlrev_b32 v5, 6, v5
    v_sub_u32 v4, v4, v5
    v_lshlrev_b32 v5, 4, v2
    v_add3_u32 v7, v4, v5, s37
    v_add_u32 v7, {XC0+448}, v7      ; B addr
    ; D fragment
    v_lshlrev_b32 v4, 2, v2
    v_add_u32 v4, v4, v1
    v_sub_u32 v4, 15, v4             ; t = 15 - m - 4kq
    s_waitcnt lgkmcnt(0)
    s_lshr_b32 s38, s19, 16
    s_and_b32 s39, s19, 0xffff
    s_bitcmp1_b32 s16, 0
    s_cselect_b32 s38, s38, s39
    s_cmp_eq_u32 s3, 0
    s_cselect_b32 s38, s38, 0
    v_mov_b32 v5, s38
""")
    for q in range(4):
        a(f"    v_cmp_eq_u32 vcc, {q}, v4")
        a(f"    v_cndmask_b32 v{112+q}, 0, v5, vcc")
    for r in range(32):
        a(f"    v_mov_b32 v{16+r}, 0")
    a("""
    s_waitcnt vmcnt(0)
    s_barrier
""")
    stamp(a, 1)
    AF, BF = 48, 80

    class LQ:
        def __init__(self):
            self.q = []

        def issue(self, tag, text):
            a(text)
            self.q.append(tag)

        def wait(self, tags):
            idx = max((i for i, t in enumerate(self.q) if t in tags), default=-1)
            if idx < 0:
                return
            n = len(self.q) - 1 - idx
            a(f"    s_waitcnt lgkmcnt({min(n, 15)})")
            if n <= 15:
                self.q = self.q[idx + 1:]

    lq = LQ()

    def rdA(cl, i):
        b = AF + 4 * i
        lq.issue(("A", cl, i), f"    ds_read_b128 v[{b}:{b+3}], v6 offset:{512*i+64*cl}")

    def rdB(cl, c):
        b = BF + 4 * c
        lq.issue(("B", cl, c), f"    ds_read_b128 v[{b}:{b+3}], v7 offset:{512*(7-c)+64*cl}")

    def mm(i, c):
        t = i + c
        A = AF + 4 * i
        B = BF + 4 * c
        a(f"    v_mfma_f32_16x16x32_bf16 v[{16+4*t}:{19+4*t}], v[{A}:{A+3}], v[{B}:{B+3}], v[{16+4*t}:{19+4*t}]")

    for k in range(8):
        rdA(0, 7 - k)
        rdB(0, k)
    for cl in range(2):
        for i in range(7, -1, -1):
            lq.wait([("A", cl, i), ("B", cl, 7 - i)])
            if cl == 1 and i == 0:
                a("    s_barrier")
            for c in range(8 - i):
                mm(i, c)
                if i == 0:
                    if cl == 0:
                        B = BF + 4 * c
                        a(f"    v_mfma_f32_16x16x32_bf16 v[{16+4*c}:{19+4*c}], v[112:115], v[{B}:{B+3}], v[{16+4*c}:{19+4*c}]")
                        rdB(1, c)
            if cl == 0:
                rdA(1, i)
    stamp(a, 2)
    a("""
    v_lshlrev_b32 v3, 4, v0
    s_lshl_b32 s37, s3, 13
    v_add_u32 v4, s37, v3
""")
    for t in range(8):
        a(f"    ds_write_b128 v4, v[{16+4*t}:{19+4*t}] offset:{1024*t}")
    a("""
    s_lshl_b32 s37, s3, 11
    v_add_u32 v4, s37, v3
    s_waitcnt lgkmcnt(0)
    s_barrier
""")
    for tt in range(2):
        for sw in range(4):
            b = 48 + 16 * tt + 4 * sw
            a(f"    ds_read_b128 v[{b}:{b+3}], v4 offset:{8192*sw+1024*tt}")
    a("""
    v_lshrrev_b32 v5, 1, v1
    v_lshlrev_b32 v5, 6, v5
    v_and_b32 v8, 1, v1
    v_lshlrev_b32 v8, 3, v8
    v_lshlrev_b32 v9, 4, v2
    v_add3_u32 v5, v5, v8, v9
    s_lshl_b32 s37, s3, 10
    v_add_u32 v5, s37, v5
    s_waitcnt lgkmcnt(0)
""")
    for tt in range(2):
        b = 48 + 16 * tt
        for r in range(4):
            a(f"    v_add_f32 v{b+r}, v{b+r}, v{b+4+r}")
            a(f"    v_add_f32 v{b+8+r}, v{b+8+r}, v{b+12+r}")
            a(f"    v_add_f32 v{b+r}, v{b+r}, v{b+8+r}")
        a(f"    v_cvt_pk_bf16_f32 v{10+2*tt}, v{b}, v{b+1}")
        a(f"    v_cvt_pk_bf16_f32 v{11+2*tt}, v{b+2}, v{b+3}")
        a(f"    buffer_store_dwordx2 v[{10+2*tt}:{11+2*tt}], v5, s[28:31], 0 offen offset:{512*tt}")
    a.label("K2_END")
    stamp_flush(a, 1, 3)
    a.label("K2_EXIT")
    a("    s_endpgm")


DESC = """
.amdhsa_kernel k2_kernel
  .amdhsa_next_free_vgpr 128
  .amdhsa_next_free_sgpr 102
  .amdhsa_accum_offset 128
  .amdhsa_group_segment_fixed_size 0
  .amdhsa_kernarg_size 96
  .amdhsa_user_sgpr_count 2
  .amdhsa_user_sgpr_kernarg_segment_ptr 1
  .amdhsa_system_sgpr_workgroup_id_x 1
.end_amdhsa_kernel
"""
```

```python
from asmlib import Asm, stamp, stamp_flush
from k1 import QH, KH, VT, OO, XR0, XR1, ZT, WOP, REG, srd, VQ

LDS = 102400 + 20480
LAUNCH = f"; @launch kernel=k3_kernel grid=(256,1,1) block=(256,1,1) lds={LDS}"


def gen_k3(a):
    a("""
.globl k3_kernel
.p2align 8
.type k3_kernel,@function
k3_kernel:
    s_cmp_ge_u32 s2, 256
    s_cbranch_scc1 K3_EXIT
    s_load_dwordx2 s[4:5], s[0:1], 88
    s_load_dwordx2 s[6:7], s[0:1], 64
    s_load_dwordx2 s[8:9], s[0:1], 0
    s_load_dwordx2 s[10:11], s[0:1], 72
    v_lshrrev_b32 v1, 6, v0
    v_and_b32 v0, 63, v0
    v_readfirstlane_b32 s3, v1
    s_and_b32 s16, s2, 7
    s_lshl_b32 s16, s16, 2
    s_lshr_b32 s17, s2, 3
    s_and_b32 s18, s17, 3
    s_add_u32 s16, s16, s18          ; st
    s_lshr_b32 s17, s2, 5            ; ct
    s_lshl_b32 s16, s16, 6           ; s0
    s_mul_i32 s18, s17, 160          ; ct*80*2
    s_lshr_b32 s19, s3, 1            ; kh2
    s_and_b32 s36, s3, 1             ; sh
    s_waitcnt lgkmcnt(0)
""")
    stamp(a, 0)
    srd(a, 20, 4, 5, REG, OO)
    srd(a, 24, 4, 5, 640 * 1280, WOP)
    srd(a, 28, 4, 5, REG, ZT)
    srd(a, 32, 8, 9, 2048 * 1280)
    srd(a, 40, 10, 11, 2048 * 2560)
    vq = VQ(a)
    a("""
    s_lshl_b32 s37, s3, 4
    s_add_u32 s37, s37, s16          ; row0 = s0 + 16w
    v_lshlrev_b32 v2, 2, v0
    v_add_u32 v2, s18, v2            ; ch*2
    v_lshlrev_b32 v3, 11, v2         ; ch*4096
    s_lshl_b32 s38, s37, 1
    v_add_u32 v3, s38, v3
    s_mul_i32 s38, s37, 1280
    v_add_u32 v4, s38, v2            ; q off
    s_mul_i32 s38, s37, 2560
    v_add_u32 v5, s38, v2
    v_mov_b32 v6, 0x7fffffff
    v_cmp_gt_u32 vcc, 40, v0
    v_cndmask_b32 v3, v6, v3, vcc
    v_cndmask_b32 v4, v6, v4, vcc
    v_cndmask_b32 v5, v6, v5, vcc
    s_mov_b32 s44, 4096
    s_mov_b32 s45, 0xffff0000
""")
    for i in range(1, 8):
        a(f"    s_mov_b32 s{48+i}, {5120*i}")
    so = lambda i: "0" if i == 0 else f"s{48+i}"
    vq.issue("F", "    buffer_load_dwordx4 v[176:179], v3, s[28:31], 0 offen")
    vq.issue("F", "    buffer_load_dwordx4 v[180:183], v3, s[28:31], 0 offen offset:16")
    vq.issue("F", "    buffer_load_dwordx4 v[184:187], v3, s[28:31], s44 offen")
    vq.issue("F", "    buffer_load_dwordx4 v[188:191], v3, s[28:31], s44 offen offset:16")
    for r in range(16):
        vq.issue("F", f"    buffer_load_dword v{192+r}, v4, s[32:35], {so(r>>2)} offen offset:{1280*(r&3)}")
    a("""
    v_lshlrev_b32 v216, 4, v0
    s_mul_i32 s37, s3, 25600
    s_mul_i32 s38, s17, 102400
    s_add_u32 s38, s38, s37
""")
    for grp in range(7):
        a(f"    s_add_u32 m0, s37, {grp*4096}")
        a(f"    s_add_u32 s39, s38, {grp*4096}")
        for j in range(4 if grp < 6 else 1):
            vq.issue("D", f"    buffer_load_dwordx4 v216, s[24:27], s39 offen offset:{1024*j} lds")
    a("""
    v_and_b32 v1, 15, v0
    v_lshrrev_b32 v2, 4, v0
    s_lshl_b32 s37, s36, 5
    s_add_u32 s37, s37, s16          ; s0 + 32sh
    s_lshr_b32 s38, s37, 4
    s_mul_i32 s38, s38, 20
    s_mul_i32 s39, s19, 10
    s_add_u32 s38, s38, s39
    s_lshl_b32 s38, s38, 10
    v_lshlrev_b32 v6, 4, v0
    v_add_u32 v6, s38, v6
    v_add_u32 v7, 0x5000, v6
    s_mov_b32 s46, 8192
""")
    for ks in range(10):
        for i in range(2):
            b = 16 + 8 * ks + 4 * i
            vq.issue("O", f"    buffer_load_dwordx4 v[{b}:{b+3}], v{6+i}, s[20:23], {['0','s44','s46'][ks>>2]} offen offset:{1024*(ks&3)}")
    a("""
    v_lshrrev_b32 v8, 1, v2
    v_lshlrev_b32 v8, 4, v8          ; 16(kq>>1)
    v_and_b32 v9, 1, v2
    v_lshlrev_b32 v9, 2, v9          ; 4(kq&1)
    v_lshrrev_b32 v10, 2, v0
    v_and_b32 v10, 3, v10            ; r
    v_add3_u32 v8, v8, v9, v10
    s_mul_i32 s38, s19, 320
    v_add_u32 v8, s38, v8
    v_mul_u32_u24 v8, 160, v8
    v_and_b32 v9, 3, v0
    v_lshl_add_u32 v8, v9, 3, v8     ; A base
""")
    for r in range(40):
        a(f"    v_mov_b32 v{96+r}, 0")
    stamp(a, 1)
    vq.wait("F")
    stamp(a, 2)
    for r in range(16):
        grp, rr = r >> 3, r & 7
        p = (rr & 1) * 4 + (rr >> 1)
        dw = grp * 4 + (p >> 1)
        if p & 1:
            a(f"    v_and_b32 v208, s45, v{176+dw}")
            a(f"    v_and_b32 v209, s45, v{184+dw}")
        else:
            a(f"    v_lshlrev_b32 v208, 16, v{176+dw}")
            a(f"    v_lshlrev_b32 v209, 16, v{184+dw}")
        a(f"    v_lshlrev_b32 v210, 16, v{192+r}")
        a(f"    v_and_b32 v211, s45, v{192+r}")
        a(f"    v_mul_f32 v208, v208, v210")
        a(f"    v_mul_f32 v209, v209, v211")
        a(f"    v_cvt_pk_bf16_f32 v{192+r}, v208, v209")
        vq.issue("S", f"    buffer_store_dword v{192+r}, v5, s[40:43], {so(r>>1)} offen offset:{2560*(r&1)}")
    stamp(a, 3)
    vq.wait("D")
    stamp(a, 4)
    vq.wait("O")
    stamp(a, 5)
    a("    s_barrier")
    stamp(a, 6)

    def areads(ks):
        b = 136 + 20 * (ks & 1)
        for c5 in range(5):
            for hf in range(2):
                a(f"    ds_read_b64_tr_b16 v[{b+4*c5+2*hf}:{b+4*c5+2*hf+1}], v8 offset:{ks*5120+hf*1280+c5*32}")

    areads(0)
    for ks in range(10):
        if ks < 9:
            areads(ks + 1)
            a("    s_waitcnt lgkmcnt(10)")
        else:
            a("    s_waitcnt lgkmcnt(0)")
        b = 136 + 20 * (ks & 1)
        for c5 in range(5):
            for i in range(2):
                acc = 96 + 8 * c5 + 4 * i
                o = 16 + 8 * ks + 4 * i
                a(f"    v_mfma_f32_16x16x32_bf16 v[{acc}:{acc+3}], v[{b+4*c5}:{b+4*c5+3}], v[{o}:{o+3}], v[{acc}:{acc+3}]")
    stamp(a, 7)
    a("""
    v_lshlrev_b32 v3, 4, v0
    s_mul_i32 s38, s36, 10240
    s_add_u32 s38, s38, 102400
    v_add_u32 v3, s38, v3
    s_cmp_eq_u32 s19, 0
    s_cbranch_scc1 K3_RED0
    s_nop 7
""")
    for t in range(10):
        a(f"    ds_write_b128 v3, v[{96+4*t}:{99+4*t}] offset:{1024*t}")
    a("""
    s_waitcnt lgkmcnt(0)
    s_barrier
    s_branch K3_END
""")
    a.label("K3_RED0")
    a("""
    v_add_u32 v6, s37, v1
    v_mul_u32_u24 v6, 0xa00, v6
    v_lshl_add_u32 v6, v2, 3, v6
    s_add_u32 s38, s18, 1280
    v_add_u32 v6, s38, v6
    v_add_u32 v7, 0xa000, v6
    s_barrier
""")
    for t in range(10):
        a(f"    ds_read_b128 v[{16+4*t}:{19+4*t}], v3 offset:{1024*t}")
    a("    s_waitcnt lgkmcnt(0)")
    for c5 in range(5):
        for i in range(2):
            t = 2 * c5 + i
            for r in range(4):
                a(f"    v_add_f32 v{96+4*t+r}, v{96+4*t+r}, v{16+4*t+r}")
            a(f"    v_cvt_pk_bf16_f32 v{60+2*t}, v{96+4*t}, v{97+4*t}")
            a(f"    v_cvt_pk_bf16_f32 v{61+2*t}, v{98+4*t}, v{99+4*t}")
            a(f"    buffer_store_dwordx2 v[{60+2*t}:{61+2*t}], v{6+i}, s[40:43], 0 offen offset:{32*c5}")
    a.label("K3_END")
    stamp_flush(a, 2, 8)
    a.label("K3_EXIT")
    a("    s_endpgm")


DESC = """
.amdhsa_kernel k3_kernel
  .amdhsa_next_free_vgpr 224
  .amdhsa_next_free_sgpr 102
  .amdhsa_accum_offset 224
  .amdhsa_group_segment_fixed_size 0
  .amdhsa_kernarg_size 96
  .amdhsa_user_sgpr_count 2
  .amdhsa_user_sgpr_kernarg_segment_ptr 1
  .amdhsa_system_sgpr_workgroup_id_x 1
.end_amdhsa_kernel
"""
```

```python
import sys, os
sys.path.insert(0, os.path.dirname(os.path.abspath(__file__)))
from asmlib import Asm
import k1
HEADER = open("concat_heads__ssm_conv_h3__sliding_block__prompt.s.ref").read().split("; Override launch")[0]

def main(out):
    launches = []
    descs = []
    a = Asm()
    k1.gen_k1(a); launches.append("; @launch kernel=k1_kernel grid=(240,1,1) block=(768,1,1) lds=163840"); descs.append(k1.K1_DESC)
    try:
        import k2
        k2.gen_k2(a); launches.append(k2.LAUNCH); descs.append(k2.DESC)
    except ImportError:
        pass
    try:
        import k3
        k3.gen_k3(a); launches.append(k3.LAUNCH); descs.append(k3.DESC)
    except ImportError:
        pass
    body = a.finalize()
    txt = HEADER + "\n".join(launches) + "\n" + '.amdgcn_target "amdgcn-amd-amdhsa--gfx950"\n.text\n' + body
    txt += '.section .rodata,"a"\n'
    for d in descs:
        txt += ".p2align 6\n" + d.lstrip("\n")
    open(out, "w").write(txt)
    print("wrote", out, len(txt), "bytes")

if __name__ == "__main__":
    import asmlib
    if "--stamp" in sys.argv:
        sys.argv.remove("--stamp")
        asmlib.STAMP = True
    main(sys.argv[1] if len(sys.argv) > 1 else "concat_heads__ssm_conv_h3__sliding_block__prompt.s")
```

```python
from asmlib import Asm, stamp, stamp_flush

QH, KH, VT, OO, XR0, XR1, ZT = 0x0, 0x280000, 0x500000, 0x780000, 0xA00000, 0xC80000, 0xF00000
WOP = 0x1180000
import math, struct
QSCALE = struct.unpack('<I', struct.pack('<f', (20 ** -0.5) * math.log2(math.e)))[0]
REG = 0x280000
NST = 10
NSLOT = 5
import os
DBG = os.environ.get('K1DBG', '')


def srd(a, d, lo, hi, size, add=0):
    if add:
        a(f"    s_add_u32 s{d}, s{lo}, 0x{add:x}")
        a(f"    s_addc_u32 s{d+1}, s{hi}, 0")
    else:
        a(f"    s_mov_b32 s{d}, s{lo}")
        a(f"    s_mov_b32 s{d+1}, s{hi}")
    a(f"    s_mov_b32 s{d+2}, 0x{size:x}")
    a(f"    s_mov_b32 s{d+3}, 0x20000")


class VQ:
    def __init__(self, a):
        self.a = a
        self.q = []

    def issue(self, tag, text):
        self.a(text)
        self.q.append(tag)

    def wait(self, tag):
        idx = max((i for i, t in enumerate(self.q) if t == tag), default=-1)
        if idx < 0:
            return
        n = len(self.q) - 1 - idx
        self.a(f"    s_waitcnt vmcnt({min(n, 63)})")
        if n <= 63:
            self.q = self.q[idx + 1:]


def gen_k1(a):
    a("""
.globl k1_kernel
.p2align 8
.type k1_kernel,@function
k1_kernel:
    s_cmp_ge_u32 s2, 240
    s_cbranch_scc1 K1_EXIT
    s_load_dwordx2 s[4:5], s[0:1], 48
    s_load_dwordx2 s[6:7], s[0:1], 56
    s_load_dwordx2 s[8:9], s[0:1], 88
    s_load_dwordx2 s[10:11], s[0:1], 8
    s_load_dwordx2 s[12:13], s[0:1], 16
    s_load_dwordx2 s[14:15], s[0:1], 24
    s_load_dwordx2 s[60:61], s[0:1], 32
    s_load_dwordx2 s[62:63], s[0:1], 0
    s_load_dwordx2 s[64:65], s[0:1], 64
    v_lshrrev_b32 v1, 6, v0
    v_and_b32 v0, 63, v0
    v_readfirstlane_b32 s3, v1
    s_and_b32 s16, s2, 7
    s_mul_i32 s16, s16, 30
    s_lshr_b32 s17, s2, 3
    s_add_u32 s16, s16, s17          ; L
    s_mul_i32 s17, s16, 1093
    s_lshr_b32 s17, s17, 16          ; sgroup
    s_mul_i32 s18, s17, 60
    s_sub_u32 s18, s16, s18          ; rem
    s_lshl_b32 s17, s17, 2
    s_and_b32 s16, s18, 3
    s_add_u32 s16, s16, s17          ; mt
    s_lshr_b32 s17, s18, 2           ; nt
    s_waitcnt lgkmcnt(0)
""")
    stamp(a, 0)
    a("""
    s_cmp_ge_u32 s3, 8
    s_cbranch_scc1 K1_PREP
    s_cmp_ge_u32 s3, 4
    s_cbranch_scc1 K1_HELPER
""")
    srd(a, 20, 4, 5, 2048 * 1280)
    srd(a, 24, 6, 7, 640 * 3840)
    a("""
    s_lshl_b32 s18, s2, 2
    s_add_u32 s18, s18, s3
    s_lshl_b32 s18, s18, 10
    v_lshlrev_b32 v1, 4, v0
    s_add_u32 s19, s18, 0xf0000
    s_add_u32 s28, s18, 0x1e0000
""")
    if 'pf' in DBG:
        a("""
    buffer_load_dwordx4 v[112:115], v1, s[20:23], s18 offen
    buffer_load_dwordx4 v[116:119], v1, s[24:27], s18 offen
    buffer_load_dwordx4 v[120:123], v1, s[20:23], s19 offen
    buffer_load_dwordx4 v[124:127], v1, s[24:27], s19 offen
    buffer_load_dwordx4 v[128:131], v1, s[20:23], s28 offen
    buffer_load_dwordx4 v[132:135], v1, s[24:27], s28 offen
""")
    if 'kv' in DBG:
        srd(a, 32, 10, 11, 2048 * 1280)
        srd(a, 36, 12, 13, 2048 * 1280)
        a("""
    buffer_load_dwordx4 v[136:139], v1, s[32:35], s18 offen
    buffer_load_dwordx4 v[140:143], v1, s[36:39], s18 offen
    buffer_load_dwordx4 v[144:147], v1, s[32:35], s19 offen
    buffer_load_dwordx4 v[148:151], v1, s[36:39], s19 offen
    buffer_load_dwordx4 v[152:155], v1, s[32:35], s28 offen
    buffer_load_dwordx4 v[156:159], v1, s[36:39], s28 offen
""")

    a("""
    s_lshr_b32 s18, s3, 1
    s_and_b32 s19, s3, 1
    v_and_b32 v1, 31, v0             ; l&31
    v_lshrrev_b32 v2, 5, v0          ; kh
    v_lshrrev_b32 v3, 1, v1
    v_and_b32 v3, 7, v3              ; f
    v_xor_b32 v3, v3, v2             ; kh ^ f
    v_lshlrev_b32 v3, 4, v3
    s_lshl_b32 s20, s18, 6
    v_add_u32 v4, s20, v1
    v_lshlrev_b32 v4, 7, v4          ; row*128
    v_add_u32 v4, v4, v3
    v_xor_b32 v5, 32, v4
    v_xor_b32 v6, 64, v4
    v_xor_b32 v7, 0x60, v4
    ; W addresses
    v_lshrrev_b32 v8, 4, v0          ; g
    v_lshrrev_b32 v9, 2, v0
    v_and_b32 v9, 3, v9              ; r
    v_and_b32 v10, 3, v0             ; c
    v_lshrrev_b32 v11, 1, v8
    v_lshlrev_b32 v11, 3, v11
    v_add_u32 v11, v11, v9           ; k_local
    v_lshlrev_b32 v11, 8, v11
    v_and_b32 v12, 1, v8
    v_lshlrev_b32 v12, 5, v12        ; 16*(g&1)*2
    v_lshlrev_b32 v10, 3, v10        ; 4c*2
    v_add3_u32 v11, v11, v12, v10
    v_add_u32 v11, 0x4000, v11
    s_lshl_b32 s20, s19, 1           ; seg j=0
    v_xor_b32 v12, s20, v9
    v_lshlrev_b32 v12, 6, v12
    v_add_u32 v8, v11, v12           ; W base j=0
    s_add_u32 s20, s20, 1
    v_xor_b32 v12, s20, v9
    v_lshlrev_b32 v12, 6, v12
    v_add_u32 v9, v11, v12           ; W base j=1
""")
    for i in range(64):
        a(f"    v_mov_b32 v{48+i}, 0")
    a("""
    v_mov_b32 v10, v4
    v_mov_b32 v11, v5
    v_mov_b32 v12, v6
    v_mov_b32 v13, v7
    v_mov_b32 v14, v8
    v_mov_b32 v15, v9
    s_mov_b32 s21, 0                 ; stage
    s_mov_b32 s22, 0
""")

    def rd_list(ks, st):
        b = 16 + 16 * st
        if 'noread' in DBG:
            return []
        r = [f"    ds_read_b128 v[{b}:{b+3}], v{10+ks}",
             f"    ds_read_b64_tr_b16 v[{b+8}:{b+9}], v14 offset:{ks*4096}",
             f"    ds_read_b64_tr_b16 v[{b+10}:{b+11}], v14 offset:{ks*4096+1024}",
             f"    ds_read_b64_tr_b16 v[{b+12}:{b+13}], v15 offset:{ks*4096}",
             f"    ds_read_b64_tr_b16 v[{b+14}:{b+15}], v15 offset:{ks*4096+1024}",
             f"    ds_read_b128 v[{b+4}:{b+7}], v{10+ks} offset:4096"]
        return r

    def step(st, vmode, rds):
        b = 16 + 16 * st
        n = 0
        rds = list(rds)
        for i in range(2):
            for j in range(2):
                acc = 48 + 16 * (2 * i + j)
                xf = f"v[{b+4*i}:{b+4*i+3}]"
                wf = f"v[{b+8+4*j}:{b+8+4*j+3}]"
                if 'nomfma' not in DBG:
                    if vmode:
                        a(f"    v_mfma_f32_32x32x16_bf16 v[{acc}:{acc+15}], {xf}, {wf}, v[{acc}:{acc+15}]")
                    else:
                        a(f"    v_mfma_f32_32x32x16_bf16 v[{acc}:{acc+15}], {wf}, {xf}, v[{acc}:{acc+15}]")
                for _ in range(2):
                    if rds:
                        a(rds.pop(0))

    def mainloop(tag, vmode):
        a("    s_barrier")
        for r in rd_list(0, 0):
            a(r)
        a.label(f"K1_LOOP_{tag}")
        a("    s_waitcnt lgkmcnt(0)")
        step(0, vmode, rd_list(1, 1))
        a("    s_waitcnt lgkmcnt(0)")
        step(1, vmode, rd_list(2, 0))
        a("    s_waitcnt lgkmcnt(0)")
        step(0, vmode, rd_list(3, 1))
        a(f"""
    s_add_u32 s21, s21, 1
    s_add_u32 s22, s22, 0x8000
    s_cmp_eq_u32 s22, 0x{NSLOT*0x8000:x}
    s_cselect_b32 s22, 0, s22
    v_add_u32 v10, s22, v4
    v_add_u32 v11, s22, v5
    v_add_u32 v12, s22, v6
    v_add_u32 v14, s22, v8
    v_add_u32 v15, s22, v9
    s_cmp_eq_u32 s21, {NST}
    s_waitcnt lgkmcnt(0)
    s_cbranch_scc1 K1_LAST_{tag}
    s_barrier
    v_add_u32 v13, s22, v7
""")
        step(1, vmode, rd_list(0, 0))
        a(f"    s_branch K1_LOOP_{tag}")
        a.label(f"K1_LAST_{tag}")
        step(1, vmode, [])

    mainloop("G", True)
    a(f"""
    s_mov_b32 s28, s8
    s_mov_b32 s29, s9
    s_mov_b32 s30, 0x{3*REG:x}
    s_mov_b32 s31, 0x20000
    s_cmp_ge_u32 s17, 5
    s_cselect_b32 s27, 1.0, 0x{QSCALE:08x}
    s_lshl_b32 s23, s19, 6
    v_add_u32 v3, s23, v1
    v_mul_u32_u24 v3, 272, v3
    s_lshl_b32 s24, s18, 7           ; wm*64*2
    v_add_u32 v3, s24, v3
    s_cmp_ge_u32 s17, 10
    s_cselect_b32 s25, 4, 3
    s_cselect_b32 s26, 8, 16
    v_lshlrev_b32 v4, s25, v2
    v_add_u32 v3, v3, v4             ; g even
    v_add_u32 v4, s26, v3            ; g odd
    s_barrier
""")
    n = 0
    for j in range(2):
        for i in range(2):
            for g in range(4):
                acc = 48 + 16 * (2 * i + j) + 4 * g
                d = 16 + 2 * (n % 8)
                n += 1
                for q in range(4):
                    a(f"    v_mul_f32 v{acc+q}, s27, v{acc+q}")
                a(f"    v_cvt_pk_bf16_f32 v{d}, v{acc}, v{acc+1}")
                a(f"    v_cvt_pk_bf16_f32 v{d+1}, v{acc+2}, v{acc+3}")
                a(f"    ds_write_b64 v{3+(g&1)}, v[{d}:{d+1}] offset:{j*32*272+i*64+(g>>1)*32}")
    a("""
    v_lshrrev_b32 v5, 4, v0
    v_and_b32 v6, 15, v0             ; chunk
    s_lshl_b32 s23, s3, 5
    v_add_u32 v5, s23, v5
    v_mul_u32_u24 v7, 272, v5
    v_lshl_add_u32 v7, v6, 4, v7
    s_lshl_b32 s23, s17, 7           ; nt*128
    v_add_u32 v5, s23, v5
    v_lshlrev_b32 v5, 12, v5         ; col*4096
    v_lshl_add_u32 v5, v6, 4, v5
    s_lshl_b32 s24, s16, 8           ; mt*128*2
    v_add_u32 v5, s24, v5
    s_waitcnt lgkmcnt(0)
    s_barrier
""")
    for t in range(8):
        a(f"    ds_read_b128 v[{48+4*t}:{51+4*t}], v7 offset:{t*4*272}")
    for t in range(8):
        a(f"    s_mov_b32 s23, {t*4*4096}")
        a(f"    s_waitcnt lgkmcnt({7-t})")
        a(f"    buffer_store_dwordx4 v[{48+4*t}:{51+4*t}], v5, s[28:31], s23 offen")
    a("    s_branch K1_END")

    a.label("K1_HELPER")
    srd(a, 20, 4, 5, 2048 * 1280)
    srd(a, 24, 6, 7, 640 * 3840)
    a("""
    s_sub_u32 s18, s3, 4             ; hw
    v_lshrrev_b32 v1, 3, v0          ; lane>>3
    v_and_b32 v2, 7, v0              ; slot
    v_lshrrev_b32 v3, 4, v0          ; lane>>4
    s_lshl_b32 s19, s16, 7
    s_lshl_b32 s28, s18, 5
    s_add_u32 s19, s19, s28
    v_add_u32 v4, s19, v1            ; row (j=0)
    v_mul_u32_u24 v4, 0x500, v4      ; *1280
    v_xor_b32 v5, v2, v3
    v_xor_b32 v6, 4, v5
    v_lshl_add_u32 v10, v5, 4, v4                 ; j=0
    v_lshl_add_u32 v11, v6, 4, v4
    v_add_u32 v11, 0x2400, v11                    ; j=1: +8*1280-1024
    v_add_u32 v12, 0x4800, v10                    ; j=2: +16*1280-2048
    v_add_u32 v13, 0x4800, v11                    ; j=3
    ; W
    s_lshl_b32 s28, s18, 4           ; hw*16
    v_add_u32 v4, s28, v3            ; krow j=0
    v_mul_u32_u24 v4, 0xf00, v4      ; *3840
    v_and_b32 v5, 15, v0
    v_lshlrev_b32 v6, 2, v3
    v_xor_b32 v5, v5, v6
    v_lshl_add_u32 v4, v5, 4, v4
    s_lshl_b32 s28, s17, 8           ; nt*256
    v_add_u32 v14, s28, v4                        ; j=0
    v_add_u32 v15, 0x3800, v14                    ; +4*3840-1024
    v_add_u32 v16, 0x7000, v14
    v_add_u32 v17, 0xa800, v14
    s_lshl_b32 s19, s18, 12          ; hw*4096
""")

    def dma(vq, st):
        slot = st % NSLOT
        if 'nodma' in DBG:
            return
        a(f"    s_add_u32 m0, s19, 0x{slot*0x8000:x}")
        a(f"    s_mov_b32 s29, {st*128}")
        for j in range(4):
            vq.issue(f"D{st}", f"    buffer_load_dwordx4 v{10+j}, s[20:23], s29 offen offset:{1024*j} lds")
        a(f"    s_add_u32 m0, s19, 0x{slot*0x8000+0x4000:x}")
        a(f"    s_mov_b32 s29, {st*245760}")
        for j in range(4):
            vq.issue(f"D{st}", f"    buffer_load_dwordx4 v{14+j}, s[24:27], s29 offen offset:{1024*j} lds")

    vq = VQ(a)
    dma(vq, 0)
    dma(vq, 1)
    dma(vq, 2)
    sched = {0: [3, 4]}
    for i in range(1, 6):
        sched[i] = [i + 4]
    for s in range(NST):
        vq.wait(f"D{s}")
        a("    s_barrier")
        if s < 9:
            stamp(a, 1 + s)
        for st in sched.get(s, []):
            dma(vq, st)
    a("    s_branch K1_END")

    a.label("K1_PREP")
    srd(a, 68, 60, 61, 640 * 4096)
    srd(a, 72, 62, 63, 2048 * 1280)
    a("""
    s_sub_u32 s18, s3, 8             ; pw
    v_lshlrev_b32 v18, 4, v0
    s_lshl_b32 s57, s2, 2
    s_add_u32 s57, s57, s18
    s_lshl_b32 s57, s57, 10          ; gid*1024
    s_add_u32 s58, s57, 0xf0000
    s_add_u32 s59, s57, 0x1e0000
    s_mul_i32 s28, s2, 3
    s_add_u32 s28, s28, s18
    s_cmp_eq_u32 s18, 3
    s_cbranch_scc1 K1_P_W3
    s_cmp_ge_u32 s28, 640
    s_cbranch_scc1 K1_P_NONE
""")
    KR, VR, SK, W, KL, KHI, XL, XH, PK = 32, 52, 72, 76, 84, 88, 92, 110, 128

    def latepf():
        for j in range(3):
            a(f"    buffer_load_dwordx4 v[160:163], v18, s[68:71], s{57+j} offen")
            a(f"    buffer_load_dwordx4 v[164:167], v18, s[72:75], s{57+j} offen")

    srd(a, 32, 10, 11, 2048 * 1280)
    srd(a, 36, 12, 13, 2048 * 1280)
    srd(a, 40, 14, 15, 640 * 8)
    srd(a, 44, 8, 9, 2 * REG, XR0)
    a("""
    s_mul_i32 s30, s28, 6554
    s_lshr_b32 s30, s30, 16          ; sg
    s_mul_i32 s31, s30, 10
    s_sub_u32 s31, s28, s31          ; cg
    s_lshl_b32 s30, s30, 5           ; sg*32
    s_lshl_b32 s31, s31, 6           ; cg*64
    v_and_b32 v20, 31, v0            ; cp
    v_lshlrev_b32 v20, 1, v20
    v_add_u32 v20, s31, v20          ; ch
    v_lshrrev_b32 v21, 5, v0
    v_lshlrev_b32 v21, 4, v21
    v_add_u32 v21, s30, v21          ; s0
    v_mul_u32_u24 v22, 0x500, v21
    v_lshl_add_u32 v22, v20, 1, v22  ; vpos
    v_subrev_u32 v23, 0x1400, v22
    v_lshlrev_b32 v24, 3, v20
    v_lshlrev_b32 v25, 12, v20       ; ch*4096
    v_lshlrev_b32 v21, 1, v21
    v_sub_u32 v25, v25, v21
    v_add_u32 v25, 0xfe0, v25
    s_mov_b32 s50, 5120
    s_mov_b32 s51, 10240
    s_mov_b32 s52, 15360
    s_mov_b32 s53, 4096
    s_mov_b32 s54, 0x280000
    s_mov_b32 s55, 0x281000
    s_mov_b32 s56, 0xffff0000
""")
    so = ["0", "s50", "s51", "s52"]
    pl = [f"    buffer_load_dwordx4 v[{SK}:{SK+3}], v24, s[40:43], 0 offen"]
    for r in range(4):
        pl.append(f"    buffer_load_dword v{KR+r}, v23, s[32:35], 0 offen offset:{1280*r}")
    pl.append(f"    buffer_load_dword v{VR}, v23, s[36:39], 0 offen offset:3840")
    for r in range(16):
        pl.append(f"    buffer_load_dword v{KR+4+r}, v22, s[32:35], {so[r>>2]} offen offset:{1280*(r&3)}")
        pl.append(f"    buffer_load_dword v{VR+1+r}, v22, s[36:39], {so[r>>2]} offen offset:{1280*(r&3)}")
    ops = []
    for c2 in range(2):
        for q in range(2):
            ops.append(f"    v_lshlrev_b32 v{W+4*c2+2*q}, 16, v{SK+2*c2+q}")
            ops.append(f"    v_and_b32 v{W+4*c2+2*q+1}, s56, v{SK+2*c2+q}")
    for r in range(3):
        ops.append(f"    v_lshlrev_b32 v{KL+(r&3)}, 16, v{KR+r}")
        ops.append(f"    v_and_b32 v{KHI+(r&3)}, s56, v{KR+r}")
    for r in range(17):
        rr = r + 3
        ops.append(f"    v_lshlrev_b32 v{KL+(rr&3)}, 16, v{KR+rr}")
        ops.append(f"    v_and_b32 v{KHI+(rr&3)}, s56, v{KR+rr}")
        for (kb, xb, wb) in ((KL, XL, W), (KHI, XH, W + 4)):
            ops.append(f"    v_mul_f32 v{xb+r}, v{kb+(rr&3)}, v{wb}")
            ops.append(f"    v_fmac_f32 v{xb+r}, v{kb+((rr-1)&3)}, v{wb+1}")
            ops.append(f"    v_fmac_f32 v{xb+r}, v{kb+((rr-2)&3)}, v{wb+2}")
            ops.append(f"    v_fmac_f32 v{xb+r}, v{kb+((rr-3)&3)}, v{wb+3}")
        ops.append(f"    v_lshlrev_b32 v26, 16, v{VR+r}")
        ops.append(f"    v_and_b32 v27, s56, v{VR+r}")
        ops.append(f"    v_mul_f32 v{XL+r}, v{XL+r}, v26")
        ops.append(f"    v_mul_f32 v{XH+r}, v{XH+r}, v27")
    so2 = {(0, 0): "0", (1, 0): "s53", (0, 1): "s54", (1, 1): "s55"}
    for c2, xb in enumerate((XL, XH)):
        for e in range(2):
            p = PK + 16 * c2 + 8 * e
            for q in range(8):
                t0 = 14 + e - 2 * q
                ops.append(f"    v_cvt_pk_bf16_f32 v{p+q}, v{xb+t0+1}, v{xb+t0}")
            for hf in range(2):
                ops.append(f"    buffer_store_dwordx4 v[{p+4*hf}:{p+4*hf+3}], v25, s[44:47], {so2[(c2,e)]} offen offset:{16*hf}")
    PB = int(os.environ.get('K1PB', 5))
    PL = int(os.environ.get('K1PL', 0))
    LPF = int(os.environ.get('K1LPF', 3))
    nch = 9 - PB
    per = (len(ops) + nch - 1) // nch
    for s_ in range(NST):
        a("    s_barrier")
        NSP = int(os.environ.get('K1NSP', 5))
        pp = (len(pl) + NSP - 1) // NSP
        if PL <= s_ < PL + NSP:
            for t in pl[(s_ - PL) * pp:(s_ - PL + 1) * pp]:
                a(t)
        if s_ == PB:
            stamp(a, 4)
            a("    s_waitcnt vmcnt(0)")
            stamp(a, 5)
        if PB <= s_ < PB + nch:
            for o in ops[(s_ - PB) * per:(s_ - PB + 1) * per]:
                a(o)
        if s_ == LPF:
            latepf()
    a("    s_branch K1_END")

    a.label("K1_P_W3")
    a("    s_cmp_ge_u32 s2, 160")
    a("    s_cbranch_scc1 K1_P_NONE")
    srd(a, 32, 64, 65, 640 * 1280)
    srd(a, 36, 8, 9, 640 * 1280, WOP)
    a("""
    s_lshl_b32 s30, s2, 2            ; k0 = 4*wg
    s_and_b32 s31, s30, 0xfffffff3
    s_and_b32 s50, s30, 4
    s_lshl_b32 s50, s50, 1
    s_or_b32 s31, s31, s50
    s_and_b32 s50, s30, 8
    s_lshr_b32 s50, s50, 1
    s_or_b32 s31, s31, s50           ; perm(k0)
    s_mul_i32 s30, s30, 1280
    s_mul_i32 s31, s31, 160
    s_movk_i32 s50, 820
    s_movk_i32 s51, 6554
    s_mov_b32 s52, 102400
""")
    for j in range(5):
        a(f"""
    v_add_u32 v20, {64*j}, v0
    v_mul_u32_u24 v21, s50, v20
    v_lshrrev_b32 v21, 16, v21       ; row
    v_mul_u32_u24 v22, 80, v21
    v_sub_u32 v22, v20, v22          ; c
    v_mul_u32_u24 v23, s51, v22
    v_lshrrev_b32 v23, 16, v23       ; slab
    v_mul_u32_u24 v24, 10, v23
    v_sub_u32 v24, v22, v24          ; cc
    v_mul_u32_u24 v25, 0x500, v21
    v_lshl_add_u32 v30, v22, 4, v25              ; src
    buffer_load_dwordx4 v[{128+4*j}:{131+4*j}], v30, s[32:35], s30 offen
    v_mul_u32_u24 v25, 160, v21
    v_lshl_add_u32 v25, v24, 4, v25
    v_mad_u32_u24 v{100+j}, v23, s52, v25        ; dst
""")
    for s_ in range(NST):
        a("    s_barrier")
        if s_ == 4:
            a("    s_waitcnt vmcnt(0)")
            for j in range(5):
                a(f"    buffer_store_dwordx4 v[{128+4*j}:{131+4*j}], v{100+j}, s[36:39], s31 offen")
        if s_ == LPF:
            latepf()
    a("    s_branch K1_END")
    a.label("K1_P_NONE")
    for s_ in range(NST):
        a("    s_barrier")
        if s_ == LPF:
            latepf()
    a.label("K1_END")
    stamp_flush(a, 0, 10)
    a.label("K1_EXIT")
    a("    s_endpgm")


K1_DESC = """
.amdhsa_kernel k1_kernel
  .amdhsa_next_free_vgpr 168
  .amdhsa_next_free_sgpr 102
  .amdhsa_accum_offset 168
  .amdhsa_group_segment_fixed_size 0
  .amdhsa_kernarg_size 96
  .amdhsa_user_sgpr_count 2
  .amdhsa_user_sgpr_kernarg_segment_ptr 1
  .amdhsa_system_sgpr_workgroup_id_x 1
.end_amdhsa_kernel
"""
```

```python
from asmlib import Asm, stamp, stamp_flush
from k1 import QH, KH, VT, OO, XR0, XR1, ZT, REG, srd
import math

LDS = 39680
LAUNCH = f"; @launch kernel=k2_kernel grid=(1152,1,1) block=(256,1,1) lds={LDS}"
KT, VTL, ONES, QT = 0, 16640, 32320, 33280
HCS, XC0, XCS = 4416, 17664, 5152


def gen_k2(a):
    a("""
.globl k2_kernel
.p2align 8
.type k2_kernel,@function
k2_kernel:
    s_cmp_ge_u32 s2, 1152
    s_cbranch_scc1 K2_EXIT
    s_load_dwordx2 s[4:5], s[0:1], 88
    s_load_dwordx2 s[6:7], s[0:1], 32
    s_load_dwordx2 s[8:9], s[0:1], 40
    v_lshrrev_b32 v1, 6, v0
    v_and_b32 v0, 63, v0
    v_readfirstlane_b32 s3, v1
""")
    stamp(a, 0)
    a("""
    s_cmp_ge_u32 s2, 512
    s_cbranch_scc1 K2_CONV_B
    s_setprio 2
    s_mov_b32 s17, s2                ; idx 0..511
    s_and_b32 s16, s17, 31
    s_lshr_b32 s17, s17, 5           ; qc
    s_lshl_b32 s18, s17, 7           ; q0
    s_sub_u32 s19, s18, 256
    s_waitcnt lgkmcnt(0)
""")
    srd(a, 20, 4, 5, 3 * REG)
    srd(a, 32, 4, 5, REG, OO)
    a("    s_mul_i32 s36, s16, 81920        ; h*20*4096")

    def dma_region(name, base, cpr, dc, magic, rowbase, keyreg, clamp):
        N = 20 * cpr
        ninstr = (N + 63) // 64
        a(f"    s_movk_i32 s40, {magic}")
        a(f"    s_add_u32 s41, s36, 0x{rowbase*4096:x}")
        for i in range((ninstr + 3) // 4):
            full = 4 * i + 3 < ninstr - 1 or (4 * i + 3 == ninstr - 1 and N % 64 == 0)
            if not full:
                a(f"    s_cmp_ge_u32 s3, {ninstr - 4*i}")
                a(f"    s_cbranch_scc1 K2A_{name}DONE")
            a(f"""
    s_add_u32 s37, s3, {4*i}          ; t
    s_lshl_b32 s38, s37, 6
    v_add_u32 v3, s38, v0            ; ci
    v_mul_u32_u24 v4, s40, v3
    v_lshrrev_b32 v4, 16, v4         ; row
    v_mul_u32_u24 v5, {cpr}, v4
    v_sub_u32 v5, v3, v5             ; pos
    v_min_u32 v5, {dc-1}, v5
    v_lshl_add_u32 v5, v5, 3, {keyreg}
""")
            if clamp:
                a("    v_max_i32 v5, 0, v5")
            a(f"""
    v_lshlrev_b32 v5, 1, v5
    v_lshl_add_u32 v5, v4, 12, v5
    s_lshl_b32 s38, s37, 10
    s_add_u32 m0, s38, {base}
""")
            if not full:
                a(f"    v_cmp_gt_u32 vcc, {N}, v3" if N <= 64 else f"    s_movk_i32 s38, {N}\n    v_cmp_gt_u32 vcc, s38, v3")
                a("    s_and_saveexec_b64 s[42:43], vcc")
            a("    buffer_load_dwordx4 v5, s[20:23], s41 offen lds")
            if not full:
                a("    s_mov_b64 exec, s[42:43]")
        a.label(f"K2A_{name}DONE")

    dma_region("Q", QT, 20, 16, 3277, 0, "s18", False)
    dma_region("K", KT, 52, 48, 1261, 640, "s19", True)
    dma_region("V", VTL, 49, 48, 1338, 1280, "s19", True)
    QF, KF, SB, OA, VF = 16, 24, 48, 96, 112
    a(f"""
    v_mov_b32 v8, 0x3f803f80
    v_mov_b32 v9, v8
    v_mov_b32 v10, v8
    v_mov_b32 v11, v8
    v_min_u32 v3, 55, v0
    v_lshlrev_b32 v3, 4, v3
    ds_write_b128 v3, v[8:11] offset:{ONES}
    v_and_b32 v1, 31, v0             ; q / key / d
    v_lshrrev_b32 v2, 5, v0
    s_lshl_b32 s37, s3, 5            ; 32w
    s_add_u32 s38, s18, s37          ; qw
    v_mov_b32 v{QF+6}, 0
    v_mov_b32 v{QF+7}, 0
    v_mov_b32 v{KF+6}, 0
    v_mov_b32 v{KF+7}, 0
    v_mov_b32 v{KF+14}, 0
    v_mov_b32 v{KF+15}, 0
    v_mov_b32 v{KF+22}, 0
    v_mov_b32 v{KF+23}, 0
    v_lshrrev_b32 v3, 2, v0
    v_and_b32 v3, 3, v3              ; r
    v_and_b32 v4, 3, v0              ; c
    v_lshlrev_b32 v4, 3, v4          ; 4c*2
    v_and_b32 v5, 16, v0             ; 16*(g&1)
    v_lshl_add_u32 v4, v5, 1, v4
    s_lshl_b32 s39, s3, 6            ; 32w*2
    v_add_u32 v4, s39, v4
    v_lshl_add_u32 v5, v2, 3, v3     ; 8kh + r
    v_mul_u32_u24 v6, 832, v5
    v_add_u32 v6, v6, v4
    v_mul_u32_u24 v7, 832, v3
    v_add_u32 v7, v7, v4
    v_add_u32 v7, {16*832}, v7
    v_mul_u32_u24 v12, 320, v5
    v_add_u32 v12, v12, v4
    v_add_u32 v12, {QT}, v12
    v_mul_u32_u24 v13, 320, v3
    v_add_u32 v13, v13, v4
    v_add_u32 v13, {QT+16*320}, v13
    v_mul_u32_u24 v8, 784, v1
    v_add_u32 v8, {VTL}, v8
    v_mov_b32 v9, {ONES}
    v_mov_b32 v10, {ONES+128}
    v_cmp_le_u32 vcc, 28, v1
    v_cndmask_b32 v9, v9, v10, vcc
    v_cmp_le_u32 vcc, 20, v1
    v_cndmask_b32 v8, v8, v9, vcc
    v_lshlrev_b32 v9, 4, v2          ; 8hh*2
    v_add3_u32 v8, v8, v9, s39       ; vV
    v_lshlrev_b32 v9, 2, v2
    v_sub_u32 v9, v1, v9
""")
    for r in range(16):
        a(f"    v_cmp_le_i32 s[{40+2*r}:{41+2*r}], {8*(r>>2)+(r&3)}, v9")
    for r in range(16):
        a(f"    v_mov_b32 v{OA+r}, 0")
    a("""
    v_mov_b32 v10, 0xff800000
    v_mov_b32 v11, 0xf149f2ca
    s_lshr_b32 s39, s38, 5
    s_sub_u32 s39, 8, s39
    s_waitcnt vmcnt(0) lgkmcnt(0)
    s_barrier
""")
    stamp(a, 1)

    def kreads(g):
        for j in range(3):
            kb = 3 * g + j
            b = KF + 8 * j
            a(f"    ds_read_b64_tr_b16 v[{b}:{b+1}], v6 offset:{kb*64}")
            a(f"    ds_read_b64_tr_b16 v[{b+2}:{b+3}], v6 offset:{kb*64+3328}")
            a(f"    ds_read_b64_tr_b16 v[{b+4}:{b+5}], v7 offset:{kb*64}")

    def vreads(kb):
        b = VF + 8 * (kb & 1)
        a(f"    ds_read_b128 v[{b}:{b+3}], v8 offset:{kb*64}")
        a(f"    ds_read_b128 v[{b+4}:{b+7}], v8 offset:{kb*64+32}")

    a(f"""
    ds_read_b64_tr_b16 v[{QF}:{QF+1}], v12
    ds_read_b64_tr_b16 v[{QF+2}:{QF+3}], v12 offset:1280
    ds_read_b64_tr_b16 v[{QF+4}:{QF+5}], v13
""")
    kreads(0)
    a(f"""
    v_cmp_eq_u32 vcc, 0, v2
    s_waitcnt lgkmcnt(9)
    v_cndmask_b32 v{QF+4}, 0, v{QF+4}, vcc
    v_cndmask_b32 v{QF+5}, 0, v{QF+5}, vcc
""")
    for g in range(3):
        for j in range(3):
            a(f"    s_waitcnt lgkmcnt({6-3*j})")
            b = KF + 8 * j
            sb = SB + 16 * j
            a(f"    v_mfma_f32_32x32x16_bf16 v[{sb}:{sb+15}], v[{b}:{b+3}], v[{QF}:{QF+3}], 0")
            a(f"    v_mfma_f32_32x32x16_bf16 v[{sb}:{sb+15}], v[{b+4}:{b+7}], v[{QF+4}:{QF+7}], v[{sb}:{sb+15}]")
        vreads(3 * g)
        vreads(3 * g + 1)
        if g < 2 or True:
            a(f"    s_cmp_le_i32 s39, {3*g}")
            a(f"    s_cbranch_scc1 K2A_NOFIX{g}")
            a("    s_nop 7")
            a("    s_nop 7")
            for j in range(3):
                kb = 3 * g + j
                if kb == 8:
                    continue
                if j:
                    a(f"    s_cmp_le_i32 s39, {kb}")
                    a(f"    s_cbranch_scc1 K2A_NOFIX{g}")
                for r in range(16):
                    a(f"    v_mov_b32 v{SB+16*j+r}, v10")
            a.label(f"K2A_NOFIX{g}")
            a("    s_nop 7")
            a("    s_nop 3")
        if g == 0:
            for r in range(16):
                a(f"    v_cndmask_b32 v{SB+r}, v{SB+r}, v10, s[{40+2*r}:{41+2*r}]")
        if g == 2:
            for r in range(16):
                a(f"    v_cndmask_b32 v{SB+32+r}, v10, v{SB+32+r}, s[{40+2*r}:{41+2*r}]")
        a(f"    v_max3_f32 v12, v{SB}, v{SB+1}, v11")
        a(f"    v_max3_f32 v13, v{SB+2}, v{SB+3}, v{SB+4}")
        i = 5
        tog = 0
        while i < 47:
            d = 12 + tog
            a(f"    v_max3_f32 v{d}, v{d}, v{SB+i}, v{SB+i+1}")
            i += 2
            tog ^= 1
        a(f"    v_max3_f32 v12, v12, v13, v{SB+47}")
        a("""
    v_mov_b32 v13, v12
    v_permlane32_swap_b32 v12, v13
    v_max_f32 v12, v12, v13
""")
        if g > 0:
            a("    v_sub_f32 v14, v11, v12")
            a("    v_exp_f32 v14, v14")
        a("    v_mov_b32 v11, v12")
        if g > 0:
            for r in range(13):
                a(f"    v_mul_f32 v{OA+r}, v{OA+r}, v14")
        for j in range(3):
            kb = 3 * g + j
            sb = SB + 16 * j
            for r in range(16):
                a(f"    v_sub_f32 v{sb+r}, v{sb+r}, v11")
            for r in range(16):
                a(f"    v_exp_f32 v{sb+r}, v{sb+r}")
            for q in range(8):
                a(f"    v_cvt_pk_bf16_f32 v{sb+q}, v{sb+2*q}, v{sb+2*q+1}")
            if j == 0:
                a("    s_waitcnt lgkmcnt(2)")
            else:
                a("    s_waitcnt lgkmcnt(2)" if j == 1 else ("    s_waitcnt lgkmcnt(9)" if g < 2 else "    s_waitcnt lgkmcnt(0)"))
            b = VF + 8 * (kb & 1)
            a(f"    v_mfma_f32_32x32x16_bf16 v[{OA}:{OA+15}], v[{b}:{b+3}], v[{sb}:{sb+3}], v[{OA}:{OA+15}]")
            a(f"    v_mfma_f32_32x32x16_bf16 v[{OA}:{OA+15}], v[{b+4}:{b+7}], v[{sb+4}:{sb+7}], v[{OA}:{OA+15}]")
            if j == 0:
                vreads(kb + 2)
            if j == 1 and g < 2:
                kreads(g + 1)
    stamp(a, 2)
    a(f"""
    v_add_u32 v3, s38, v1
    v_lshrrev_b32 v4, 4, v3
    v_mul_u32_u24 v4, 0x5000, v4     ; (s>>4)*20480
    v_and_b32 v3, 15, v3
    v_lshl_add_u32 v3, v3, 4, v4     ; + (s&15)*16
    s_mul_i32 s39, s16, 20
    v_lshlrev_b32 v4, 2, v2
    v_add_u32 v4, s39, v4            ; k0 = h*20 + 4hh
""")
    for g in range(3):
        a(f"""
    v_add_u32 v5, {8*g}, v4
    v_lshrrev_b32 v6, 3, v5
    v_lshlrev_b32 v6, 8, v6          ; (k>>3)*256 == (k>>5)*1024 + ((k>>3)&3)*256
    v_and_b32 v5, 7, v5
    v_lshl_add_u32 v5, v5, 1, v6
    v_add_u32 v{12+g}, v3, v5
""")
    a(f"""
    v_cmp_eq_u32 vcc, 0, v2
    v_mov_b32 v5, 0x7fffffff
    v_cndmask_b32 v14, v5, v14, vcc
    v_rcp_f32 v11, v{OA+12}
""")
    for r in range(12):
        a(f"    v_mul_f32 v{OA+r}, v{OA+r}, v11")
    for g in range(3):
        a(f"    v_cvt_pk_bf16_f32 v{16+2*g}, v{OA+4*g}, v{OA+1+4*g}")
        a(f"    v_cvt_pk_bf16_f32 v{17+2*g}, v{OA+2+4*g}, v{OA+3+4*g}")
        a(f"    buffer_store_dwordx2 v[{16+2*g}:{17+2*g}], v{12+g}, s[32:35], 0 offen")
    a("    s_branch K2_END")

    a.label("K2_CONV_B")
    a("    s_sub_u32 s16, s2, 512")
    a(f"""
    s_lshl_b32 s17, s16, 12          ; ch*4096
    s_lshr_b32 s18, s16, 1
    s_lshl_b32 s18, s18, 2
    s_waitcnt lgkmcnt(0)
    s_load_dword s19, s[8:9], s18
    s_add_u32 s20, s6, s17
    s_addc_u32 s21, s7, 0
    s_mov_b32 s22, 0x1000
    s_mov_b32 s23, 0x20000
    s_and_b32 s36, s3, 1             ; e
    s_mul_i32 s37, s36, 0x{REG:x}
    s_add_u32 s37, s37, s17
    s_add_u32 s37, s37, 0x{XR0:x}
    s_add_u32 s24, s4, s37
    s_addc_u32 s25, s5, 0
    s_mov_b32 s26, 0x1000
    s_mov_b32 s27, 0x20000
    s_add_u32 s37, s17, 0x{ZT:x}
    s_add_u32 s28, s4, s37
    s_addc_u32 s29, s5, 0
    s_mov_b32 s30, 0x1000
    s_mov_b32 s31, 0x20000
    ; h copy c = w
    s_mul_i32 s37, s3, {HCS}
    s_mov_b32 m0, s37
    s_sub_u32 s38, s3, 16
    v_add_u32 v2, s38, v0
    v_lshlrev_b32 v2, 2, v2
    buffer_load_dword v2, s[20:23], 0 offen lds
    s_add_u32 m0, s37, 256
    s_lshl_b32 s38, s3, 2
    s_add_u32 s38, s38, 192
    v_lshlrev_b32 v3, 4, v0
    v_add_u32 v2, s38, v3
    buffer_load_dwordx4 v2, s[20:23], 0 offen lds
    buffer_load_dwordx4 v2, s[20:23], 0 offen offset:1024 lds
    buffer_load_dwordx4 v2, s[20:23], 0 offen offset:2048 lds
    buffer_load_dwordx4 v2, s[20:23], 0 offen offset:3072 lds
    ; x copy e
    s_lshr_b32 s38, s3, 1
    s_mul_i32 s38, s38, 3072
    s_mul_i32 s37, s36, {XCS}
    s_add_u32 s37, s37, s38
    s_add_u32 m0, s37, {XC0}
    v_add_u32 v2, s38, v3
    buffer_load_dwordx4 v2, s[24:27], 0 offen lds
    buffer_load_dwordx4 v2, s[24:27], 0 offen offset:1024 lds
    s_cmp_ge_u32 s3, 2
    s_cbranch_scc1 K2C_XDONE
    buffer_load_dwordx4 v2, s[24:27], 0 offen offset:2048 lds
""")
    a.label("K2C_XDONE")
    a(f"""
    v_and_b32 v1, 15, v0             ; m / n
    v_lshrrev_b32 v2, 4, v0
    v_add_u32 v4, 1, v1
    v_and_b32 v5, 3, v4              ; c'
    v_lshrrev_b32 v4, 2, v4
    v_add_u32 v4, v4, v2
    v_lshlrev_b32 v4, 4, v4
    v_mul_u32_u24 v5, {HCS}, v5
    s_lshl_b32 s37, s3, 7            ; 128w
    v_add3_u32 v6, v4, v5, s37       ; A addr
    v_and_b32 v4, 1, v1
    v_mul_u32_u24 v4, {XCS}, v4
    v_lshrrev_b32 v5, 1, v1
    v_lshlrev_b32 v5, 6, v5
    v_sub_u32 v4, v4, v5
    v_lshlrev_b32 v5, 4, v2
    v_add3_u32 v7, v4, v5, s37
    v_add_u32 v7, {XC0+448}, v7      ; B addr
    ; D fragment
    v_lshlrev_b32 v4, 2, v2
    v_add_u32 v4, v4, v1
    v_sub_u32 v4, 15, v4             ; t = 15 - m - 4kq
    s_waitcnt lgkmcnt(0)
    s_lshr_b32 s38, s19, 16
    s_and_b32 s39, s19, 0xffff
    s_bitcmp1_b32 s16, 0
    s_cselect_b32 s38, s38, s39
    s_cmp_eq_u32 s3, 0
    s_cselect_b32 s38, s38, 0
    v_mov_b32 v5, s38
""")
    for q in range(4):
        a(f"    v_cmp_eq_u32 vcc, {q}, v4")
        a(f"    v_cndmask_b32 v{112+q}, 0, v5, vcc")
    for r in range(32):
        a(f"    v_mov_b32 v{16+r}, 0")
    a("""
    s_waitcnt vmcnt(0)
    s_barrier
""")
    stamp(a, 1)
    AF, BF = 48, 80

    class LQ:
        def __init__(self):
            self.q = []

        def issue(self, tag, text):
            a(text)
            self.q.append(tag)

        def wait(self, tags):
            idx = max((i for i, t in enumerate(self.q) if t in tags), default=-1)
            if idx < 0:
                return
            n = len(self.q) - 1 - idx
            a(f"    s_waitcnt lgkmcnt({min(n, 15)})")
            if n <= 15:
                self.q = self.q[idx + 1:]

    lq = LQ()

    def rdA(cl, i):
        b = AF + 4 * i
        lq.issue(("A", cl, i), f"    ds_read_b128 v[{b}:{b+3}], v6 offset:{512*i+64*cl}")

    def rdB(cl, c):
        b = BF + 4 * c
        lq.issue(("B", cl, c), f"    ds_read_b128 v[{b}:{b+3}], v7 offset:{512*(7-c)+64*cl}")

    def mm(i, c):
        t = i + c
        A = AF + 4 * i
        B = BF + 4 * c
        a(f"    v_mfma_f32_16x16x32_bf16 v[{16+4*t}:{19+4*t}], v[{A}:{A+3}], v[{B}:{B+3}], v[{16+4*t}:{19+4*t}]")

    for k in range(8):
        rdA(0, 7 - k)
        rdB(0, k)
    for cl in range(2):
        for i in range(7, -1, -1):
            lq.wait([("A", cl, i), ("B", cl, 7 - i)])
            if cl == 1 and i == 0:
                a("    s_barrier")
            for c in range(8 - i):
                mm(i, c)
                if i == 0:
                    if cl == 0:
                        B = BF + 4 * c
                        a(f"    v_mfma_f32_16x16x32_bf16 v[{16+4*c}:{19+4*c}], v[112:115], v[{B}:{B+3}], v[{16+4*c}:{19+4*c}]")
                        rdB(1, c)
            if cl == 0:
                rdA(1, i)
    stamp(a, 2)
    a("""
    v_lshlrev_b32 v3, 4, v0
    s_lshl_b32 s37, s3, 13
    v_add_u32 v4, s37, v3
""")
    for t in range(8):
        a(f"    ds_write_b128 v4, v[{16+4*t}:{19+4*t}] offset:{1024*t}")
    a("""
    s_lshl_b32 s37, s3, 11
    v_add_u32 v4, s37, v3
    s_waitcnt lgkmcnt(0)
    s_barrier
""")
    for tt in range(2):
        for sw in range(4):
            b = 48 + 16 * tt + 4 * sw
            a(f"    ds_read_b128 v[{b}:{b+3}], v4 offset:{8192*sw+1024*tt}")
    a("""
    v_lshrrev_b32 v5, 1, v1
    v_lshlrev_b32 v5, 6, v5
    v_and_b32 v8, 1, v1
    v_lshlrev_b32 v8, 3, v8
    v_lshlrev_b32 v9, 4, v2
    v_add3_u32 v5, v5, v8, v9
    s_lshl_b32 s37, s3, 10
    v_add_u32 v5, s37, v5
    s_waitcnt lgkmcnt(0)
""")
    for tt in range(2):
        b = 48 + 16 * tt
        for r in range(4):
            a(f"    v_add_f32 v{b+r}, v{b+r}, v{b+4+r}")
            a(f"    v_add_f32 v{b+8+r}, v{b+8+r}, v{b+12+r}")
            a(f"    v_add_f32 v{b+r}, v{b+r}, v{b+8+r}")
        a(f"    v_cvt_pk_bf16_f32 v{10+2*tt}, v{b}, v{b+1}")
        a(f"    v_cvt_pk_bf16_f32 v{11+2*tt}, v{b+2}, v{b+3}")
        a(f"    buffer_store_dwordx2 v[{10+2*tt}:{11+2*tt}], v5, s[28:31], 0 offen offset:{512*tt}")
    a.label("K2_END")
    stamp_flush(a, 1, 3)
    a.label("K2_EXIT")
    a("    s_endpgm")


DESC = """
.amdhsa_kernel k2_kernel
  .amdhsa_next_free_vgpr 128
  .amdhsa_next_free_sgpr 102
  .amdhsa_accum_offset 128
  .amdhsa_group_segment_fixed_size 0
  .amdhsa_kernarg_size 96
  .amdhsa_user_sgpr_count 2
  .amdhsa_user_sgpr_kernarg_segment_ptr 1
  .amdhsa_system_sgpr_workgroup_id_x 1
.end_amdhsa_kernel
"""
```

```python
from asmlib import Asm, stamp, stamp_flush
from k1 import QH, KH, VT, OO, XR0, XR1, ZT, WOP, REG, srd, VQ

LDS = 102400 + 20480
LAUNCH = f"; @launch kernel=k3_kernel grid=(256,1,1) block=(512,1,1) lds={LDS}"


def gen_k3(a):
    a("""
.globl k3_kernel
.p2align 8
.type k3_kernel,@function
k3_kernel:
    s_cmp_ge_u32 s2, 256
    s_cbranch_scc1 K3_EXIT
    s_load_dwordx2 s[4:5], s[0:1], 88
    s_load_dwordx2 s[8:9], s[0:1], 0
    s_load_dwordx2 s[10:11], s[0:1], 72
    v_lshrrev_b32 v1, 6, v0
    v_and_b32 v0, 63, v0
    v_readfirstlane_b32 s3, v1
    s_and_b32 s16, s2, 7
    s_lshl_b32 s16, s16, 2
    s_lshr_b32 s17, s2, 3
    s_and_b32 s18, s17, 3
    s_add_u32 s16, s16, s18          ; st
    s_lshr_b32 s17, s2, 5            ; ct
    s_lshl_b32 s16, s16, 6           ; s0
    s_mul_i32 s18, s17, 160          ; ct*80*2
    s_cmp_ge_u32 s3, 4
    s_cbranch_scc1 K3_FINAL
    s_lshr_b32 s19, s3, 1            ; kh2
    s_and_b32 s36, s3, 1             ; sh
    v_lshlrev_b32 v216, 4, v0
    s_mul_i32 s37, s3, 25600
    s_mul_i32 s38, s17, 102400
    s_add_u32 s38, s38, s37
    s_waitcnt lgkmcnt(0)
""")
    stamp(a, 0)
    srd(a, 24, 4, 5, 640 * 1280, WOP)
    vq = VQ(a)
    for grp in range(7):
        a(f"    s_add_u32 m0, s37, {grp*4096}")
        a(f"    s_add_u32 s39, s38, {grp*4096}")
        for j in range(4 if grp < 6 else 1):
            vq.issue("D", f"    buffer_load_dwordx4 v216, s[24:27], s39 offen offset:{1024*j} lds")
    srd(a, 20, 4, 5, REG, OO)
    srd(a, 40, 10, 11, 2048 * 2560)
    a("""
    v_and_b32 v1, 15, v0
    v_lshrrev_b32 v2, 4, v0
    s_lshl_b32 s37, s36, 5
    s_add_u32 s37, s37, s16          ; s0 + 32sh
    s_lshr_b32 s38, s37, 4
    s_mul_i32 s38, s38, 20
    s_mul_i32 s39, s19, 10
    s_add_u32 s38, s38, s39
    s_lshl_b32 s38, s38, 10
    v_lshlrev_b32 v6, 4, v0
    v_add_u32 v6, s38, v6
    v_add_u32 v7, 0x5000, v6
    s_mov_b32 s44, 4096
    s_mov_b32 s46, 8192
""")
    for ks in range(10):
        for i in range(2):
            b = 16 + 8 * ks + 4 * i
            vq.issue("O", f"    buffer_load_dwordx4 v[{b}:{b+3}], v{6+i}, s[20:23], {['0','s44','s46'][ks>>2]} offen offset:{1024*(ks&3)}")
    a("""
    v_lshrrev_b32 v8, 1, v2
    v_lshlrev_b32 v8, 4, v8          ; 16(kq>>1)
    v_and_b32 v9, 1, v2
    v_lshlrev_b32 v9, 2, v9          ; 4(kq&1)
    v_lshrrev_b32 v10, 2, v0
    v_and_b32 v10, 3, v10            ; r
    v_add3_u32 v8, v8, v9, v10
    s_mul_i32 s38, s19, 320
    v_add_u32 v8, s38, v8
    v_mul_u32_u24 v8, 160, v8
    v_and_b32 v9, 3, v0
    v_lshl_add_u32 v8, v9, 3, v8     ; A base
""")
    for r in range(40):
        a(f"    v_mov_b32 v{96+r}, 0")
    stamp(a, 1)
    vq.wait("D")
    a("    s_barrier")
    stamp(a, 2)

    def alist(ks):
        b = 136 + 20 * (ks & 1)
        return [f"    ds_read_b64_tr_b16 v[{b+4*c5+2*hf}:{b+4*c5+2*hf+1}], v8 offset:{ks*5120+hf*1280+c5*32}"
                for c5 in range(5) for hf in range(2)]

    for t in alist(0):
        a(t)
    for ks in range(10):
        nxt = alist(ks + 1) if ks < 9 else []
        a(f"    s_waitcnt vmcnt({18-2*ks}) lgkmcnt(0)")
        b = 136 + 20 * (ks & 1)
        for c5 in range(5):
            for i in range(2):
                acc = 96 + 8 * c5 + 4 * i
                o = 16 + 8 * ks + 4 * i
                a(f"    v_mfma_f32_16x16x32_bf16 v[{acc}:{acc+3}], v[{b+4*c5}:{b+4*c5+3}], v[{o}:{o+3}], v[{acc}:{acc+3}]")
                if nxt:
                    a(nxt.pop(0))
    stamp(a, 3)
    a("""
    v_lshlrev_b32 v3, 4, v0
    s_mul_i32 s38, s36, 10240
    s_add_u32 s38, s38, 102400
    v_add_u32 v3, s38, v3
    s_cmp_eq_u32 s19, 0
    s_cbranch_scc1 K3_RED0
    s_nop 7
""")
    for t in range(10):
        a(f"    ds_write_b128 v3, v[{96+4*t}:{99+4*t}] offset:{1024*t}")
    a("""
    s_waitcnt lgkmcnt(0)
    s_barrier
    s_branch K3_END
""")
    a.label("K3_RED0")
    a("""
    v_add_u32 v6, s37, v1
    v_mul_u32_u24 v6, 0xa00, v6
    v_lshl_add_u32 v6, v2, 3, v6
    s_add_u32 s38, s18, 1280
    v_add_u32 v6, s38, v6
    v_add_u32 v7, 0xa000, v6
    s_barrier
""")
    for t in range(10):
        a(f"    ds_read_b128 v[{16+4*t}:{19+4*t}], v3 offset:{1024*t}")
    for c5 in range(5):
        for i in range(2):
            t = 2 * c5 + i
            a(f"    s_waitcnt lgkmcnt({9-t})")
            for r in range(4):
                a(f"    v_add_f32 v{96+4*t+r}, v{96+4*t+r}, v{16+4*t+r}")
            a(f"    v_cvt_pk_bf16_f32 v{60+2*t}, v{96+4*t}, v{97+4*t}")
            a(f"    v_cvt_pk_bf16_f32 v{61+2*t}, v{98+4*t}, v{99+4*t}")
            a(f"    buffer_store_dwordx2 v[{60+2*t}:{61+2*t}], v{6+i}, s[40:43], 0 offen offset:{32*c5}")
    a("    s_branch K3_END")

    a.label("K3_FINAL")
    a("""
    s_sub_u32 s19, s3, 4
    s_lshl_b32 s37, s19, 4
    s_add_u32 s37, s37, s16          ; row0 = s0 + 16w
    v_lshlrev_b32 v2, 2, v0
    v_add_u32 v2, s18, v2            ; ch*2
    v_lshlrev_b32 v3, 11, v2         ; ch*4096
    s_lshl_b32 s38, s37, 1
    v_add_u32 v3, s38, v3
    s_mul_i32 s38, s37, 1280
    v_add_u32 v4, s38, v2            ; q off
    s_mul_i32 s38, s37, 2560
    v_add_u32 v5, s38, v2
    v_mov_b32 v6, 0x7fffffff
    v_cmp_gt_u32 vcc, 40, v0
    v_cndmask_b32 v3, v6, v3, vcc
    v_cndmask_b32 v4, v6, v4, vcc
    v_cndmask_b32 v5, v6, v5, vcc
    s_mov_b32 s44, 4096
    s_mov_b32 s45, 0xffff0000
""")
    for i in range(1, 8):
        a(f"    s_mov_b32 s{48+i}, {5120*i}")
    a("    s_waitcnt lgkmcnt(0)")
    stamp(a, 0)
    srd(a, 28, 4, 5, REG, ZT)
    srd(a, 32, 8, 9, 2048 * 1280)
    srd(a, 40, 10, 11, 2048 * 2560)
    so = lambda i: "0" if i == 0 else f"s{48+i}"
    a("    buffer_load_dwordx4 v[16:19], v3, s[28:31], 0 offen")
    a("    buffer_load_dwordx4 v[20:23], v3, s[28:31], 0 offen offset:16")
    a("    buffer_load_dwordx4 v[24:27], v3, s[28:31], s44 offen")
    a("    buffer_load_dwordx4 v[28:31], v3, s[28:31], s44 offen offset:16")
    for r in range(16):
        a(f"    buffer_load_dword v{32+r}, v4, s[32:35], {so(r>>2)} offen offset:{1280*(r&3)}")
    a("    s_barrier")
    for r in range(16):
        grp, rr = r >> 3, r & 7
        p = (rr & 1) * 4 + (rr >> 1)
        dw = grp * 4 + (p >> 1)
        a("    s_waitcnt vmcnt(15)")
        if p & 1:
            a(f"    v_and_b32 v8, s45, v{16+dw}")
            a(f"    v_and_b32 v9, s45, v{24+dw}")
        else:
            a(f"    v_lshlrev_b32 v8, 16, v{16+dw}")
            a(f"    v_lshlrev_b32 v9, 16, v{24+dw}")
        a(f"    v_lshlrev_b32 v10, 16, v{32+r}")
        a(f"    v_and_b32 v11, s45, v{32+r}")
        a(f"    v_mul_f32 v8, v8, v10")
        a(f"    v_mul_f32 v9, v9, v11")
        a(f"    v_cvt_pk_bf16_f32 v{32+r}, v8, v9")
        a(f"    buffer_store_dword v{32+r}, v5, s[40:43], {so(r>>1)} offen offset:{2560*(r&1)}")
    a("    s_branch K3_EXIT")
    a.label("K3_END")
    stamp_flush(a, 2, 8)
    a.label("K3_EXIT")
    a("    s_endpgm")


DESC = """
.amdhsa_kernel k3_kernel
  .amdhsa_next_free_vgpr 224
  .amdhsa_next_free_sgpr 102
  .amdhsa_accum_offset 224
  .amdhsa_group_segment_fixed_size 0
  .amdhsa_kernarg_size 96
  .amdhsa_user_sgpr_count 2
  .amdhsa_user_sgpr_kernarg_segment_ptr 1
  .amdhsa_system_sgpr_workgroup_id_x 1
.end_amdhsa_kernel
"""
```

```python
from asmlib import Asm, stamp, stamp_flush

QH, KH, VT, OO, XR0, XR1, ZT = 0x0, 0x280000, 0x500000, 0x780000, 0xA00000, 0xC80000, 0xF00000
WOP = 0x1180000
import math, struct
QSCALE = struct.unpack('<I', struct.pack('<f', (20 ** -0.5) * math.log2(math.e)))[0]
REG = 0x280000
NST = 10
NSLOT = 5
import os
DBG = os.environ.get('K1DBG', 'pf')


def srd(a, d, lo, hi, size, add=0):
    if add:
        a(f"    s_add_u32 s{d}, s{lo}, 0x{add:x}")
        a(f"    s_addc_u32 s{d+1}, s{hi}, 0")
    else:
        a(f"    s_mov_b32 s{d}, s{lo}")
        a(f"    s_mov_b32 s{d+1}, s{hi}")
    a(f"    s_mov_b32 s{d+2}, 0x{size:x}")
    a(f"    s_mov_b32 s{d+3}, 0x20000")


class VQ:
    def __init__(self, a):
        self.a = a
        self.q = []

    def issue(self, tag, text):
        self.a(text)
        self.q.append(tag)

    def wait(self, tag):
        idx = max((i for i, t in enumerate(self.q) if t == tag), default=-1)
        if idx < 0:
            return
        n = len(self.q) - 1 - idx
        self.a(f"    s_waitcnt vmcnt({min(n, 63)})")
        if n <= 63:
            self.q = self.q[idx + 1:]


def gen_k1(a):
    a("""
.globl k1_kernel
.p2align 8
.type k1_kernel,@function
k1_kernel:
    s_cmp_ge_u32 s2, 240
    s_cbranch_scc1 K1_EXIT
    s_load_dwordx2 s[4:5], s[0:1], 48
    s_load_dwordx2 s[6:7], s[0:1], 56
    s_load_dwordx2 s[8:9], s[0:1], 88
    s_load_dwordx2 s[10:11], s[0:1], 8
    s_load_dwordx2 s[12:13], s[0:1], 16
    s_load_dwordx2 s[14:15], s[0:1], 24
    s_load_dwordx2 s[60:61], s[0:1], 32
    s_load_dwordx2 s[62:63], s[0:1], 0
    s_load_dwordx2 s[64:65], s[0:1], 64
    v_lshrrev_b32 v1, 6, v0
    v_and_b32 v0, 63, v0
    v_readfirstlane_b32 s3, v1
    s_and_b32 s16, s2, 7
    s_mul_i32 s16, s16, 30
    s_lshr_b32 s17, s2, 3
    s_add_u32 s16, s16, s17          ; L
    s_mul_i32 s17, s16, 1093
    s_lshr_b32 s17, s17, 16          ; sgroup
    s_mul_i32 s18, s17, 60
    s_sub_u32 s18, s16, s18          ; rem
    s_lshl_b32 s17, s17, 2
    s_and_b32 s16, s18, 3
    s_add_u32 s16, s16, s17          ; mt
    s_lshr_b32 s17, s18, 2           ; nt
    s_waitcnt lgkmcnt(0)
""")
    stamp(a, 0)
    a("""
    s_cmp_ge_u32 s3, 8
    s_cbranch_scc1 K1_PREP
    s_cmp_ge_u32 s3, 4
    s_cbranch_scc1 K1_HELPER
""")
    srd(a, 20, 4, 5, 2048 * 1280)
    srd(a, 24, 6, 7, 640 * 3840)
    a("""
    s_lshl_b32 s18, s2, 2
    s_add_u32 s18, s18, s3
    s_lshl_b32 s18, s18, 10
    v_lshlrev_b32 v1, 4, v0
    s_add_u32 s19, s18, 0xf0000
    s_add_u32 s28, s18, 0x1e0000
""")
    if 'pf' in DBG:
        a("""
    buffer_load_dwordx4 v[112:115], v1, s[20:23], s18 offen
    buffer_load_dwordx4 v[116:119], v1, s[24:27], s18 offen
    buffer_load_dwordx4 v[120:123], v1, s[20:23], s19 offen
    buffer_load_dwordx4 v[124:127], v1, s[24:27], s19 offen
    buffer_load_dwordx4 v[128:131], v1, s[20:23], s28 offen
    buffer_load_dwordx4 v[132:135], v1, s[24:27], s28 offen
""")
    if 'kv' in DBG:
        srd(a, 32, 10, 11, 2048 * 1280)
        srd(a, 36, 12, 13, 2048 * 1280)
        a("""
    buffer_load_dwordx4 v[136:139], v1, s[32:35], s18 offen
    buffer_load_dwordx4 v[140:143], v1, s[36:39], s18 offen
    buffer_load_dwordx4 v[144:147], v1, s[32:35], s19 offen
    buffer_load_dwordx4 v[148:151], v1, s[36:39], s19 offen
    buffer_load_dwordx4 v[152:155], v1, s[32:35], s28 offen
    buffer_load_dwordx4 v[156:159], v1, s[36:39], s28 offen
""")

    a("""
    s_lshr_b32 s18, s3, 1
    s_and_b32 s19, s3, 1
    v_and_b32 v1, 31, v0             ; l&31
    v_lshrrev_b32 v2, 5, v0          ; kh
    v_lshrrev_b32 v3, 1, v1
    v_and_b32 v3, 7, v3              ; f
    v_xor_b32 v3, v3, v2             ; kh ^ f
    v_lshlrev_b32 v3, 4, v3
    s_lshl_b32 s20, s18, 6
    v_add_u32 v4, s20, v1
    v_lshlrev_b32 v4, 7, v4          ; row*128
    v_add_u32 v4, v4, v3
    v_xor_b32 v5, 32, v4
    v_xor_b32 v6, 64, v4
    v_xor_b32 v7, 0x60, v4
    ; W addresses
    v_lshrrev_b32 v8, 4, v0          ; g
    v_lshrrev_b32 v9, 2, v0
    v_and_b32 v9, 3, v9              ; r
    v_and_b32 v10, 3, v0             ; c
    v_lshrrev_b32 v11, 1, v8
    v_lshlrev_b32 v11, 3, v11
    v_add_u32 v11, v11, v9           ; k_local
    v_lshlrev_b32 v11, 8, v11
    v_and_b32 v12, 1, v8
    v_lshlrev_b32 v12, 5, v12        ; 16*(g&1)*2
    v_lshlrev_b32 v10, 3, v10        ; 4c*2
    v_add3_u32 v11, v11, v12, v10
    v_add_u32 v11, 0x4000, v11
    s_lshl_b32 s20, s19, 1           ; seg j=0
    v_xor_b32 v12, s20, v9
    v_lshlrev_b32 v12, 6, v12
    v_add_u32 v8, v11, v12           ; W base j=0
    s_add_u32 s20, s20, 1
    v_xor_b32 v12, s20, v9
    v_lshlrev_b32 v12, 6, v12
    v_add_u32 v9, v11, v12           ; W base j=1
""")
    for i in range(64):
        a(f"    v_mov_b32 v{48+i}, 0")
    a("""
    v_mov_b32 v10, v4
    v_mov_b32 v11, v5
    v_mov_b32 v12, v6
    v_mov_b32 v13, v7
    v_mov_b32 v14, v8
    v_mov_b32 v15, v9
    s_mov_b32 s21, 0                 ; stage
    s_mov_b32 s22, 0
""")

    def rd_list(ks, st):
        b = 16 + 16 * st
        if 'noread' in DBG:
            return []
        r = [f"    ds_read_b128 v[{b}:{b+3}], v{10+ks}",
             f"    ds_read_b64_tr_b16 v[{b+8}:{b+9}], v14 offset:{ks*4096}",
             f"    ds_read_b64_tr_b16 v[{b+10}:{b+11}], v14 offset:{ks*4096+1024}",
             f"    ds_read_b64_tr_b16 v[{b+12}:{b+13}], v15 offset:{ks*4096}",
             f"    ds_read_b64_tr_b16 v[{b+14}:{b+15}], v15 offset:{ks*4096+1024}",
             f"    ds_read_b128 v[{b+4}:{b+7}], v{10+ks} offset:4096"]
        return r

    def step(st, vmode, rds):
        b = 16 + 16 * st
        n = 0
        rds = list(rds)
        for i in range(2):
            for j in range(2):
                acc = 48 + 16 * (2 * i + j)
                xf = f"v[{b+4*i}:{b+4*i+3}]"
                wf = f"v[{b+8+4*j}:{b+8+4*j+3}]"
                if 'nomfma' not in DBG:
                    if vmode:
                        a(f"    v_mfma_f32_32x32x16_bf16 v[{acc}:{acc+15}], {xf}, {wf}, v[{acc}:{acc+15}]")
                    else:
                        a(f"    v_mfma_f32_32x32x16_bf16 v[{acc}:{acc+15}], {wf}, {xf}, v[{acc}:{acc+15}]")
                for _ in range(2):
                    if rds:
                        a(rds.pop(0))

    def mainloop(tag, vmode):
        a("    s_barrier")
        for r in rd_list(0, 0):
            a(r)
        a.label(f"K1_LOOP_{tag}")
        a("    s_waitcnt lgkmcnt(0)")
        step(0, vmode, rd_list(1, 1))
        a("    s_waitcnt lgkmcnt(0)")
        step(1, vmode, rd_list(2, 0))
        a("    s_waitcnt lgkmcnt(0)")
        step(0, vmode, rd_list(3, 1))
        a(f"""
    s_add_u32 s21, s21, 1
    s_add_u32 s22, s22, 0x8000
    s_cmp_eq_u32 s22, 0x{NSLOT*0x8000:x}
    s_cselect_b32 s22, 0, s22
    v_add_u32 v10, s22, v4
    v_add_u32 v11, s22, v5
    v_add_u32 v12, s22, v6
    v_add_u32 v14, s22, v8
    v_add_u32 v15, s22, v9
    s_cmp_eq_u32 s21, {NST}
    s_waitcnt lgkmcnt(0)
    s_cbranch_scc1 K1_LAST_{tag}
    s_barrier
    v_add_u32 v13, s22, v7
""")
        step(1, vmode, rd_list(0, 0))
        a(f"    s_branch K1_LOOP_{tag}")
        a.label(f"K1_LAST_{tag}")
        step(1, vmode, [])

    mainloop("G", True)
    a(f"""
    s_mov_b32 s28, s8
    s_mov_b32 s29, s9
    s_mov_b32 s30, 0x{3*REG:x}
    s_mov_b32 s31, 0x20000
    s_cmp_ge_u32 s17, 5
    s_cselect_b32 s27, 1.0, 0x{QSCALE:08x}
    s_lshl_b32 s23, s19, 6
    v_add_u32 v3, s23, v1
    v_mul_u32_u24 v3, 272, v3
    s_lshl_b32 s24, s18, 7           ; wm*64*2
    v_add_u32 v3, s24, v3
    s_cmp_ge_u32 s17, 10
    s_cselect_b32 s25, 4, 3
    s_cselect_b32 s26, 8, 16
    v_lshlrev_b32 v4, s25, v2
    v_add_u32 v3, v3, v4             ; g even
    v_add_u32 v4, s26, v3            ; g odd
    s_barrier
""")
    n = 0
    for j in range(2):
        for i in range(2):
            for g in range(4):
                acc = 48 + 16 * (2 * i + j) + 4 * g
                d = 16 + 2 * (n % 8)
                n += 1
                for q in range(4):
                    a(f"    v_mul_f32 v{acc+q}, s27, v{acc+q}")
                a(f"    v_cvt_pk_bf16_f32 v{d}, v{acc}, v{acc+1}")
                a(f"    v_cvt_pk_bf16_f32 v{d+1}, v{acc+2}, v{acc+3}")
                a(f"    ds_write_b64 v{3+(g&1)}, v[{d}:{d+1}] offset:{j*32*272+i*64+(g>>1)*32}")
    a("""
    v_lshrrev_b32 v5, 4, v0
    v_and_b32 v6, 15, v0             ; chunk
    s_lshl_b32 s23, s3, 5
    v_add_u32 v5, s23, v5
    v_mul_u32_u24 v7, 272, v5
    v_lshl_add_u32 v7, v6, 4, v7
    s_lshl_b32 s23, s17, 7           ; nt*128
    v_add_u32 v5, s23, v5
    v_lshlrev_b32 v5, 12, v5         ; col*4096
    v_lshl_add_u32 v5, v6, 4, v5
    s_lshl_b32 s24, s16, 8           ; mt*128*2
    v_add_u32 v5, s24, v5
    s_waitcnt lgkmcnt(0)
    s_barrier
""")
    for t in range(8):
        a(f"    ds_read_b128 v[{48+4*t}:{51+4*t}], v7 offset:{t*4*272}")
    for t in range(8):
        a(f"    s_mov_b32 s23, {t*4*4096}")
        a(f"    s_waitcnt lgkmcnt({7-t})")
        a(f"    buffer_store_dwordx4 v[{48+4*t}:{51+4*t}], v5, s[28:31], s23 offen")
    a("    s_branch K1_END")

    a.label("K1_HELPER")
    srd(a, 20, 4, 5, 2048 * 1280)
    srd(a, 24, 6, 7, 640 * 3840)
    a("""
    s_sub_u32 s18, s3, 4             ; hw
    v_lshrrev_b32 v1, 3, v0          ; lane>>3
    v_and_b32 v2, 7, v0              ; slot
    v_lshrrev_b32 v3, 4, v0          ; lane>>4
    s_lshl_b32 s19, s16, 7
    s_lshl_b32 s28, s18, 5
    s_add_u32 s19, s19, s28
    v_add_u32 v4, s19, v1            ; row (j=0)
    v_mul_u32_u24 v4, 0x500, v4      ; *1280
    v_xor_b32 v5, v2, v3
    v_xor_b32 v6, 4, v5
    v_lshl_add_u32 v10, v5, 4, v4                 ; j=0
    v_lshl_add_u32 v11, v6, 4, v4
    v_add_u32 v11, 0x2400, v11                    ; j=1: +8*1280-1024
    v_add_u32 v12, 0x4800, v10                    ; j=2: +16*1280-2048
    v_add_u32 v13, 0x4800, v11                    ; j=3
    ; W
    s_lshl_b32 s28, s18, 4           ; hw*16
    v_add_u32 v4, s28, v3            ; krow j=0
    v_mul_u32_u24 v4, 0xf00, v4      ; *3840
    v_and_b32 v5, 15, v0
    v_lshlrev_b32 v6, 2, v3
    v_xor_b32 v5, v5, v6
    v_lshl_add_u32 v4, v5, 4, v4
    s_lshl_b32 s28, s17, 8           ; nt*256
    v_add_u32 v14, s28, v4                        ; j=0
    v_add_u32 v15, 0x3800, v14                    ; +4*3840-1024
    v_add_u32 v16, 0x7000, v14
    v_add_u32 v17, 0xa800, v14
    s_lshl_b32 s19, s18, 12          ; hw*4096
""")

    def dma(vq, st):
        slot = st % NSLOT
        if 'nodma' in DBG:
            return
        a(f"    s_add_u32 m0, s19, 0x{slot*0x8000:x}")
        a(f"    s_mov_b32 s29, {st*128}")
        for j in range(4):
            vq.issue(f"D{st}", f"    buffer_load_dwordx4 v{10+j}, s[20:23], s29 offen offset:{1024*j} lds")
        a(f"    s_add_u32 m0, s19, 0x{slot*0x8000+0x4000:x}")
        a(f"    s_mov_b32 s29, {st*245760}")
        for j in range(4):
            vq.issue(f"D{st}", f"    buffer_load_dwordx4 v{14+j}, s[24:27], s29 offen offset:{1024*j} lds")

    vq = VQ(a)
    dma(vq, 0)
    dma(vq, 1)
    dma(vq, 2)
    sched = {0: [3, 4]}
    for i in range(1, 6):
        sched[i] = [i + 4]
    for s in range(NST):
        vq.wait(f"D{s}")
        a("    s_barrier")
        if s < 9:
            stamp(a, 1 + s)
        for st in sched.get(s, []):
            dma(vq, st)
    a("    s_branch K1_END")

    a.label("K1_PREP")
    srd(a, 68, 60, 61, 640 * 4096)
    srd(a, 72, 62, 63, 2048 * 1280)
    a("""
    s_sub_u32 s18, s3, 8             ; pw
    v_lshlrev_b32 v18, 4, v0
    s_lshl_b32 s57, s2, 2
    s_add_u32 s57, s57, s18
    s_lshl_b32 s57, s57, 10          ; gid*1024
    s_add_u32 s58, s57, 0xf0000
    s_add_u32 s59, s57, 0x1e0000
    s_mul_i32 s28, s2, 3
    s_add_u32 s28, s28, s18
    s_cmp_eq_u32 s18, 3
    s_cbranch_scc1 K1_P_NONE
    s_cmp_ge_u32 s28, 640
    s_cbranch_scc1 K1_P_NONE
""")
    KR, VR, SK, W, KL, KHI, XL, XH, PK = 32, 52, 72, 76, 84, 88, 92, 110, 128

    def latepf():
        for j in range(3):
            a(f"    buffer_load_dwordx4 v[160:163], v18, s[68:71], s{57+j} offen")
            a(f"    buffer_load_dwordx4 v[164:167], v18, s[72:75], s{57+j} offen")

    srd(a, 32, 10, 11, 2048 * 1280)
    srd(a, 36, 12, 13, 2048 * 1280)
    srd(a, 40, 14, 15, 640 * 8)
    srd(a, 44, 8, 9, 2 * REG, XR0)
    a("""
    s_mul_i32 s30, s28, 6554
    s_lshr_b32 s30, s30, 16          ; sg
    s_mul_i32 s31, s30, 10
    s_sub_u32 s31, s28, s31          ; cg
    s_lshl_b32 s30, s30, 5           ; sg*32
    s_lshl_b32 s31, s31, 6           ; cg*64
    v_and_b32 v20, 31, v0            ; cp
    v_lshlrev_b32 v20, 1, v20
    v_add_u32 v20, s31, v20          ; ch
    v_lshrrev_b32 v21, 5, v0
    v_lshlrev_b32 v21, 4, v21
    v_add_u32 v21, s30, v21          ; s0
    v_mul_u32_u24 v22, 0x500, v21
    v_lshl_add_u32 v22, v20, 1, v22  ; vpos
    v_subrev_u32 v23, 0x1400, v22
    v_lshlrev_b32 v24, 3, v20
    v_lshlrev_b32 v25, 12, v20       ; ch*4096
    v_lshlrev_b32 v21, 1, v21
    v_sub_u32 v25, v25, v21
    v_add_u32 v25, 0xfe0, v25
    s_mov_b32 s50, 5120
    s_mov_b32 s51, 10240
    s_mov_b32 s52, 15360
    s_mov_b32 s53, 4096
    s_mov_b32 s54, 0x280000
    s_mov_b32 s55, 0x281000
    s_mov_b32 s56, 0xffff0000
""")
    so = ["0", "s50", "s51", "s52"]
    pl = [f"    buffer_load_dwordx4 v[{SK}:{SK+3}], v24, s[40:43], 0 offen"]
    for r in range(4):
        pl.append(f"    buffer_load_dword v{KR+r}, v23, s[32:35], 0 offen offset:{1280*r}")
    pl.append(f"    buffer_load_dword v{VR}, v23, s[36:39], 0 offen offset:3840")
    for r in range(16):
        pl.append(f"    buffer_load_dword v{KR+4+r}, v22, s[32:35], {so[r>>2]} offen offset:{1280*(r&3)}")
        pl.append(f"    buffer_load_dword v{VR+1+r}, v22, s[36:39], {so[r>>2]} offen offset:{1280*(r&3)}")
    ops = []
    for c2 in range(2):
        for q in range(2):
            ops.append(f"    v_lshlrev_b32 v{W+4*c2+2*q}, 16, v{SK+2*c2+q}")
            ops.append(f"    v_and_b32 v{W+4*c2+2*q+1}, s56, v{SK+2*c2+q}")
    for r in range(3):
        ops.append(f"    v_lshlrev_b32 v{KL+(r&3)}, 16, v{KR+r}")
        ops.append(f"    v_and_b32 v{KHI+(r&3)}, s56, v{KR+r}")
    for r in range(17):
        rr = r + 3
        ops.append(f"    v_lshlrev_b32 v{KL+(rr&3)}, 16, v{KR+rr}")
        ops.append(f"    v_and_b32 v{KHI+(rr&3)}, s56, v{KR+rr}")
        for (kb, xb, wb) in ((KL, XL, W), (KHI, XH, W + 4)):
            ops.append(f"    v_mul_f32 v{xb+r}, v{kb+(rr&3)}, v{wb}")
            ops.append(f"    v_fmac_f32 v{xb+r}, v{kb+((rr-1)&3)}, v{wb+1}")
            ops.append(f"    v_fmac_f32 v{xb+r}, v{kb+((rr-2)&3)}, v{wb+2}")
            ops.append(f"    v_fmac_f32 v{xb+r}, v{kb+((rr-3)&3)}, v{wb+3}")
        ops.append(f"    v_lshlrev_b32 v26, 16, v{VR+r}")
        ops.append(f"    v_and_b32 v27, s56, v{VR+r}")
        ops.append(f"    v_mul_f32 v{XL+r}, v{XL+r}, v26")
        ops.append(f"    v_mul_f32 v{XH+r}, v{XH+r}, v27")
    so2 = {(0, 0): "0", (1, 0): "s53", (0, 1): "s54", (1, 1): "s55"}
    for c2, xb in enumerate((XL, XH)):
        for e in range(2):
            p = PK + 16 * c2 + 8 * e
            for q in range(8):
                t0 = 14 + e - 2 * q
                ops.append(f"    v_cvt_pk_bf16_f32 v{p+q}, v{xb+t0+1}, v{xb+t0}")
            for hf in range(2):
                ops.append(f"    buffer_store_dwordx4 v[{p+4*hf}:{p+4*hf+3}], v25, s[44:47], {so2[(c2,e)]} offen offset:{16*hf}")
    PL = int(os.environ.get('K1PL', 6))
    LPF = int(os.environ.get('K1LPF', 99))
    NB = NST + 2
    PC = int(os.environ.get('K1PC', 9))
    nchunk = NB - PC
    per = (len(ops) + nchunk - 1) // nchunk
    for s_ in range(NB):
        a("    s_barrier")
        if s_ == PL:
            for t in pl:
                a(t)
        if s_ == PC:
            a("    s_waitcnt vmcnt(0)")
        if s_ >= PC:
            for o in ops[(s_ - PC) * per:(s_ - PC + 1) * per]:
                a(o)
    a("    s_branch K1_END")

    a.label("K1_P_NONE")
    for s_ in range(NST):
        a("    s_barrier")
        if s_ == LPF:
            latepf()
    a.label("K1_END")
    stamp_flush(a, 0, 10)
    a.label("K1_EXIT")
    a("    s_endpgm")


K1_DESC = """
.amdhsa_kernel k1_kernel
  .amdhsa_next_free_vgpr 168
  .amdhsa_next_free_sgpr 102
  .amdhsa_accum_offset 168
  .amdhsa_group_segment_fixed_size 0
  .amdhsa_kernarg_size 96
  .amdhsa_user_sgpr_count 2
  .amdhsa_user_sgpr_kernarg_segment_ptr 1
  .amdhsa_system_sgpr_workgroup_id_x 1
.end_amdhsa_kernel
"""
```

```python
from asmlib import Asm, stamp, stamp_flush
from k1 import QH, KH, VT, OO, XR0, XR1, ZT, WOP, REG, srd
import math

LDS = 39680
LAUNCH = f"; @launch kernel=k2_kernel grid=(872,1,1) block=(256,1,1) lds={LDS}"
KT, VTL, ONES, QT = 0, 16640, 32320, 33280
HCS, XC0, XCS = 4480, 8960, 4576
CH_L = 8960 + 2 * 4576


def gen_k2(a):
    a("""
.globl k2_kernel
.p2align 8
.type k2_kernel,@function
k2_kernel:
    s_cmp_ge_u32 s2, 872
    s_cbranch_scc1 K2_EXIT
    s_load_dwordx2 s[4:5], s[0:1], 88
    s_load_dwordx2 s[6:7], s[0:1], 32
    s_load_dwordx2 s[8:9], s[0:1], 40
    s_load_dwordx2 s[10:11], s[0:1], 64
    s_load_dwordx2 s[12:13], s[0:1], 0
    v_lshrrev_b32 v1, 6, v0
    v_and_b32 v0, 63, v0
    v_readfirstlane_b32 s3, v1
""")
    stamp(a, 0)
    a("""
    s_cmp_ge_u32 s2, 832
    s_cbranch_scc1 K2_AUX
    s_cmp_ge_u32 s2, 512
    s_cbranch_scc1 K2_CONV_B
    s_setprio 2
    s_mov_b32 s17, s2                ; idx 0..511
    s_and_b32 s16, s17, 31
    s_lshr_b32 s17, s17, 5           ; qc
    s_lshl_b32 s18, s17, 7           ; q0
    s_sub_u32 s19, s18, 256
    s_waitcnt lgkmcnt(0)
""")
    srd(a, 20, 4, 5, 3 * REG)
    srd(a, 32, 4, 5, REG, OO)
    a("    s_mul_i32 s36, s16, 81920        ; h*20*4096")

    def dma_region(name, base, cpr, dc, magic, rowbase, keyreg, clamp):
        N = 20 * cpr
        ninstr = (N + 63) // 64
        a(f"    s_movk_i32 s40, {magic}")
        a(f"    s_add_u32 s41, s36, 0x{rowbase*4096:x}")
        for i in range((ninstr + 3) // 4):
            full = 4 * i + 3 < ninstr - 1 or (4 * i + 3 == ninstr - 1 and N % 64 == 0)
            if not full:
                a(f"    s_cmp_ge_u32 s3, {ninstr - 4*i}")
                a(f"    s_cbranch_scc1 K2A_{name}DONE")
            a(f"""
    s_add_u32 s37, s3, {4*i}          ; t
    s_lshl_b32 s38, s37, 6
    v_add_u32 v3, s38, v0            ; ci
    v_mul_u32_u24 v4, s40, v3
    v_lshrrev_b32 v4, 16, v4         ; row
    v_mul_u32_u24 v5, {cpr}, v4
    v_sub_u32 v5, v3, v5             ; pos
    v_min_u32 v5, {dc-1}, v5
    v_lshl_add_u32 v5, v5, 3, {keyreg}
""")
            if clamp:
                a("    v_max_i32 v5, 0, v5")
            a(f"""
    v_lshlrev_b32 v5, 1, v5
    v_lshl_add_u32 v5, v4, 12, v5
    s_lshl_b32 s38, s37, 10
    s_add_u32 m0, s38, {base}
""")
            if not full:
                a(f"    v_cmp_gt_u32 vcc, {N}, v3" if N <= 64 else f"    s_movk_i32 s38, {N}\n    v_cmp_gt_u32 vcc, s38, v3")
                a("    s_and_saveexec_b64 s[42:43], vcc")
            a("    buffer_load_dwordx4 v5, s[20:23], s41 offen lds")
            if not full:
                a("    s_mov_b64 exec, s[42:43]")
        a.label(f"K2A_{name}DONE")

    dma_region("Q", QT, 20, 16, 3277, 0, "s18", False)
    dma_region("K", KT, 52, 48, 1261, 640, "s19", True)
    dma_region("V", VTL, 49, 48, 1338, 1280, "s19", True)
    QF, KF, SB, OA, VF = 16, 24, 48, 96, 112
    a(f"""
    v_mov_b32 v8, 0x3f803f80
    v_mov_b32 v9, v8
    v_mov_b32 v10, v8
    v_mov_b32 v11, v8
    v_min_u32 v3, 55, v0
    v_lshlrev_b32 v3, 4, v3
    ds_write_b128 v3, v[8:11] offset:{ONES}
    v_and_b32 v1, 31, v0             ; q / key / d
    v_lshrrev_b32 v2, 5, v0
    s_lshl_b32 s37, s3, 5            ; 32w
    s_add_u32 s38, s18, s37          ; qw
    v_mov_b32 v{QF+6}, 0
    v_mov_b32 v{QF+7}, 0
    v_mov_b32 v{KF+6}, 0
    v_mov_b32 v{KF+7}, 0
    v_mov_b32 v{KF+14}, 0
    v_mov_b32 v{KF+15}, 0
    v_mov_b32 v{KF+22}, 0
    v_mov_b32 v{KF+23}, 0
    v_lshrrev_b32 v3, 2, v0
    v_and_b32 v3, 3, v3              ; r
    v_and_b32 v4, 3, v0              ; c
    v_lshlrev_b32 v4, 3, v4          ; 4c*2
    v_and_b32 v5, 16, v0             ; 16*(g&1)
    v_lshl_add_u32 v4, v5, 1, v4
    s_lshl_b32 s39, s3, 6            ; 32w*2
    v_add_u32 v4, s39, v4
    v_lshl_add_u32 v5, v2, 3, v3     ; 8kh + r
    v_mul_u32_u24 v6, 832, v5
    v_add_u32 v6, v6, v4
    v_mul_u32_u24 v7, 832, v3
    v_add_u32 v7, v7, v4
    v_add_u32 v7, {16*832}, v7
    v_mul_u32_u24 v12, 320, v5
    v_add_u32 v12, v12, v4
    v_add_u32 v12, {QT}, v12
    v_mul_u32_u24 v13, 320, v3
    v_add_u32 v13, v13, v4
    v_add_u32 v13, {QT+16*320}, v13
    v_mul_u32_u24 v8, 784, v1
    v_add_u32 v8, {VTL}, v8
    v_mov_b32 v9, {ONES}
    v_mov_b32 v10, {ONES+128}
    v_cmp_le_u32 vcc, 28, v1
    v_cndmask_b32 v9, v9, v10, vcc
    v_cmp_le_u32 vcc, 20, v1
    v_cndmask_b32 v8, v8, v9, vcc
    v_lshlrev_b32 v9, 4, v2          ; 8hh*2
    v_add3_u32 v8, v8, v9, s39       ; vV
    v_lshlrev_b32 v9, 2, v2
    v_sub_u32 v9, v1, v9
""")
    for r in range(16):
        a(f"    v_cmp_le_i32 s[{40+2*r}:{41+2*r}], {8*(r>>2)+(r&3)}, v9")
    for r in range(16):
        a(f"    v_mov_b32 v{OA+r}, 0")
    a("""
    v_mov_b32 v10, 0xff800000
    v_mov_b32 v11, 0xf149f2ca
    s_lshr_b32 s39, s38, 5
    s_sub_u32 s39, 8, s39
    s_waitcnt vmcnt(0) lgkmcnt(0)
    s_barrier
""")
    stamp(a, 1)

    def kreads(g):
        for j in range(3):
            kb = 3 * g + j
            b = KF + 8 * j
            a(f"    ds_read_b64_tr_b16 v[{b}:{b+1}], v6 offset:{kb*64}")
            a(f"    ds_read_b64_tr_b16 v[{b+2}:{b+3}], v6 offset:{kb*64+3328}")
            a(f"    ds_read_b64_tr_b16 v[{b+4}:{b+5}], v7 offset:{kb*64}")

    def vreads(kb):
        b = VF + 8 * (kb & 1)
        a(f"    ds_read_b128 v[{b}:{b+3}], v8 offset:{kb*64}")
        a(f"    ds_read_b128 v[{b+4}:{b+7}], v8 offset:{kb*64+32}")

    a(f"""
    ds_read_b64_tr_b16 v[{QF}:{QF+1}], v12
    ds_read_b64_tr_b16 v[{QF+2}:{QF+3}], v12 offset:1280
    ds_read_b64_tr_b16 v[{QF+4}:{QF+5}], v13
""")
    kreads(0)
    a(f"""
    v_cmp_eq_u32 vcc, 0, v2
    s_waitcnt lgkmcnt(9)
    v_cndmask_b32 v{QF+4}, 0, v{QF+4}, vcc
    v_cndmask_b32 v{QF+5}, 0, v{QF+5}, vcc
""")
    for g in range(3):
        for j in range(3):
            a(f"    s_waitcnt lgkmcnt({6-3*j})")
            b = KF + 8 * j
            sb = SB + 16 * j
            a(f"    v_mfma_f32_32x32x16_bf16 v[{sb}:{sb+15}], v[{b}:{b+3}], v[{QF}:{QF+3}], 0")
            a(f"    v_mfma_f32_32x32x16_bf16 v[{sb}:{sb+15}], v[{b+4}:{b+7}], v[{QF+4}:{QF+7}], v[{sb}:{sb+15}]")
        vreads(3 * g)
        vreads(3 * g + 1)
        if g < 2 or True:
            a(f"    s_cmp_le_i32 s39, {3*g}")
            a(f"    s_cbranch_scc1 K2A_NOFIX{g}")
            a("    s_nop 7")
            a("    s_nop 7")
            for j in range(3):
                kb = 3 * g + j
                if kb == 8:
                    continue
                if j:
                    a(f"    s_cmp_le_i32 s39, {kb}")
                    a(f"    s_cbranch_scc1 K2A_NOFIX{g}")
                for r in range(16):
                    a(f"    v_mov_b32 v{SB+16*j+r}, v10")
            a.label(f"K2A_NOFIX{g}")
            a("    s_nop 7")
            a("    s_nop 3")
        if g == 0:
            for r in range(16):
                a(f"    v_cndmask_b32 v{SB+r}, v{SB+r}, v10, s[{40+2*r}:{41+2*r}]")
        if g == 2:
            for r in range(16):
                a(f"    v_cndmask_b32 v{SB+32+r}, v10, v{SB+32+r}, s[{40+2*r}:{41+2*r}]")
        a(f"    v_max3_f32 v12, v{SB}, v{SB+1}, v11")
        a(f"    v_max3_f32 v13, v{SB+2}, v{SB+3}, v{SB+4}")
        i = 5
        tog = 0
        while i < 47:
            d = 12 + tog
            a(f"    v_max3_f32 v{d}, v{d}, v{SB+i}, v{SB+i+1}")
            i += 2
            tog ^= 1
        a(f"    v_max3_f32 v12, v12, v13, v{SB+47}")
        a("""
    v_mov_b32 v13, v12
    v_permlane32_swap_b32 v12, v13
    v_max_f32 v12, v12, v13
""")
        if g > 0:
            a("    v_sub_f32 v14, v11, v12")
            a("    v_exp_f32 v14, v14")
        a("    v_mov_b32 v11, v12")
        if g > 0:
            for r in range(13):
                a(f"    v_mul_f32 v{OA+r}, v{OA+r}, v14")
        for j in range(3):
            kb = 3 * g + j
            sb = SB + 16 * j
            for r in range(16):
                a(f"    v_sub_f32 v{sb+r}, v{sb+r}, v11")
            for r in range(16):
                a(f"    v_exp_f32 v{sb+r}, v{sb+r}")
            for q in range(8):
                a(f"    v_cvt_pk_bf16_f32 v{sb+q}, v{sb+2*q}, v{sb+2*q+1}")
            if j == 0:
                a("    s_waitcnt lgkmcnt(2)")
            else:
                a("    s_waitcnt lgkmcnt(2)" if j == 1 else ("    s_waitcnt lgkmcnt(9)" if g < 2 else "    s_waitcnt lgkmcnt(0)"))
            b = VF + 8 * (kb & 1)
            a(f"    v_mfma_f32_32x32x16_bf16 v[{OA}:{OA+15}], v[{b}:{b+3}], v[{sb}:{sb+3}], v[{OA}:{OA+15}]")
            a(f"    v_mfma_f32_32x32x16_bf16 v[{OA}:{OA+15}], v[{b+4}:{b+7}], v[{sb+4}:{sb+7}], v[{OA}:{OA+15}]")
            if j == 0:
                vreads(kb + 2)
            if j == 1 and g < 2:
                kreads(g + 1)
    stamp(a, 2)
    a(f"""
    v_add_u32 v3, s38, v1
    v_lshrrev_b32 v4, 4, v3
    v_mul_u32_u24 v4, 0x5000, v4     ; (s>>4)*20480
    v_and_b32 v3, 15, v3
    v_lshl_add_u32 v3, v3, 4, v4     ; + (s&15)*16
    s_mul_i32 s39, s16, 20
    v_lshlrev_b32 v4, 2, v2
    v_add_u32 v4, s39, v4            ; k0 = h*20 + 4hh
""")
    for g in range(3):
        a(f"""
    v_add_u32 v5, {8*g}, v4
    v_lshrrev_b32 v6, 3, v5
    v_lshlrev_b32 v6, 8, v6          ; (k>>3)*256 == (k>>5)*1024 + ((k>>3)&3)*256
    v_and_b32 v5, 7, v5
    v_lshl_add_u32 v5, v5, 1, v6
    v_add_u32 v{12+g}, v3, v5
""")
    a(f"""
    v_cmp_eq_u32 vcc, 0, v2
    v_mov_b32 v5, 0x7fffffff
    v_cndmask_b32 v14, v5, v14, vcc
    v_rcp_f32 v11, v{OA+12}
""")
    for r in range(12):
        a(f"    v_mul_f32 v{OA+r}, v{OA+r}, v11")
    for g in range(3):
        a(f"    v_cvt_pk_bf16_f32 v{16+2*g}, v{OA+4*g}, v{OA+1+4*g}")
        a(f"    v_cvt_pk_bf16_f32 v{17+2*g}, v{OA+2+4*g}, v{OA+3+4*g}")
        a(f"    buffer_store_dwordx2 v[{16+2*g}:{17+2*g}], v{12+g}, s[32:35], 0 offen")
    a("    s_branch K2_END")

    a.label("K2_CONV_B")
    a(f"""
    s_sub_u32 s16, s2, 512
    s_lshl_b32 s16, s16, 1
    s_lshr_b32 s36, s3, 1            ; cw
    s_add_u32 s16, s16, s36          ; ch
    s_and_b32 s35, s3, 1             ; hw
    s_mul_i32 s34, s36, {CH_L}
    s_lshl_b32 s17, s16, 12          ; ch*4096
    s_lshr_b32 s18, s16, 1
    s_lshl_b32 s18, s18, 2
    s_waitcnt lgkmcnt(0)
    s_load_dword s19, s[8:9], s18
    s_add_u32 s20, s6, s17
    s_addc_u32 s21, s7, 0
    s_mov_b32 s22, 0x1000
    s_mov_b32 s23, 0x20000
    s_mul_i32 s37, s35, 0x{REG:x}
    s_add_u32 s37, s37, s17
    s_add_u32 s37, s37, 0x{XR0:x}
    s_add_u32 s24, s4, s37
    s_addc_u32 s25, s5, 0
    s_mov_b32 s26, 0x1000
    s_mov_b32 s27, 0x20000
    s_add_u32 s37, s17, 0x{ZT:x}
    s_add_u32 s28, s4, s37
    s_addc_u32 s29, s5, 0
    s_mov_b32 s30, 0x1000
    s_mov_b32 s31, 0x20000
    s_mul_i32 s37, s35, {HCS}
    s_add_u32 s37, s37, s34
    s_mov_b32 m0, s37
    s_sub_u32 s38, s35, 16
    v_add_u32 v2, s38, v0
    v_lshlrev_b32 v2, 2, v2
    buffer_load_dword v2, s[20:23], 0 offen lds
    s_add_u32 m0, s37, 256
    s_lshl_b32 s38, s35, 2
    s_add_u32 s38, s38, 192
    v_lshlrev_b32 v3, 4, v0
    v_add_u32 v2, s38, v3
    buffer_load_dwordx4 v2, s[20:23], 0 offen lds
    buffer_load_dwordx4 v2, s[20:23], 0 offen offset:1024 lds
    buffer_load_dwordx4 v2, s[20:23], 0 offen offset:2048 lds
    buffer_load_dwordx4 v2, s[20:23], 0 offen offset:3072 lds
    s_mul_i32 s37, s35, {XCS}
    s_add_u32 s37, s37, s34
    s_add_u32 m0, s37, {XC0}
    v_add_u32 v4, 0x1000, v3
    buffer_load_dwordx4 v3, s[24:27], 0 offen lds
    buffer_load_dwordx4 v3, s[24:27], 0 offen offset:1024 lds
    buffer_load_dwordx4 v3, s[24:27], 0 offen offset:2048 lds
    buffer_load_dwordx4 v3, s[24:27], 0 offen offset:3072 lds
    s_add_u32 m0, s37, {XC0+4096}
    s_mov_b64 exec, 0x0fffffff
    buffer_load_dwordx4 v4, s[24:27], 0 offen lds
    s_mov_b64 exec, -1
    v_and_b32 v1, 15, v0             ; m / n
    v_lshrrev_b32 v2, 4, v0
    v_add_u32 v4, 1, v1
    v_and_b32 v5, 1, v4              ; c2
    v_lshrrev_b32 v4, 1, v4
    v_lshlrev_b32 v4, 3, v4          ; 4*((m+1)>>1)*2
    v_lshl_add_u32 v4, v2, 4, v4
    v_mul_u32_u24 v5, {HCS}, v5
    s_lshl_b32 s37, s35, 8           ; 4 classes * 64
    s_add_u32 s37, s37, s34
    v_add3_u32 v6, v4, v5, s37       ; A addr
    v_and_b32 v4, 1, v1
    v_mul_u32_u24 v4, {XCS}, v4
    v_lshrrev_b32 v5, 1, v1
    v_lshlrev_b32 v5, 6, v5
    v_sub_u32 v4, v4, v5
    v_lshlrev_b32 v5, 4, v2
    v_add3_u32 v7, v4, v5, s37
    v_add_u32 v7, {XC0+448}, v7      ; B addr
    ; D fragment
    v_lshlrev_b32 v4, 2, v2
    v_add_u32 v4, v4, v1
    v_sub_u32 v4, 15, v4             ; t = 15 - m - 4kq
    s_waitcnt lgkmcnt(0)
    s_lshr_b32 s38, s19, 16
    s_and_b32 s39, s19, 0xffff
    s_bitcmp1_b32 s16, 0
    s_cselect_b32 s38, s38, s39
    s_cmp_eq_u32 s35, 0
    s_cselect_b32 s38, s38, 0
    v_mov_b32 v5, s38
""")
    for q in range(4):
        a(f"    v_cmp_eq_u32 vcc, {q}, v4")
        a(f"    v_cndmask_b32 v{112+q}, 0, v5, vcc")
    for r in range(32):
        a(f"    v_mov_b32 v{16+r}, 0")
    a("""
    s_waitcnt vmcnt(0)
    s_barrier
""")
    stamp(a, 1)
    AF, BF = 48, 80

    class LQ:
        def __init__(self):
            self.q = []

        def issue(self, tag, text):
            a(text)
            self.q.append(tag)

        def wait(self, tags):
            idx = max((i for i, t in enumerate(self.q) if t in tags), default=-1)
            if idx < 0:
                return
            n = len(self.q) - 1 - idx
            a(f"    s_waitcnt lgkmcnt({min(n, 15)})")
            if n <= 15:
                self.q = self.q[idx + 1:]

    lq = LQ()

    def rdA(cl, i):
        b = AF + 4 * i
        lq.issue(("A", cl, i), f"    ds_read_b64 v[{b}:{b+1}], v6 offset:{512*i+64*cl}")
        lq.issue(("A", cl, i), f"    ds_read_b64 v[{b+2}:{b+3}], v6 offset:{512*i+64*cl+8}")

    def rdB(cl, c):
        b = BF + 4 * c
        lq.issue(("B", cl, c), f"    ds_read_b128 v[{b}:{b+3}], v7 offset:{512*(7-c)+64*cl}")

    def mm(i, c):
        t = i + c
        A = AF + 4 * i
        B = BF + 4 * c
        a(f"    v_mfma_f32_16x16x32_bf16 v[{16+4*t}:{19+4*t}], v[{A}:{A+3}], v[{B}:{B+3}], v[{16+4*t}:{19+4*t}]")

    NCL = 4
    for k in range(8):
        rdA(0, 7 - k)
        rdB(0, k)
    for cl in range(NCL):
        for i in range(7, -1, -1):
            lq.wait([("A", cl, i), ("B", cl, 7 - i)])
            if cl == NCL - 1 and i == 0:
                a("    s_barrier")
            for c in range(8 - i):
                mm(i, c)
                if i == 0:
                    if cl == 0:
                        B = BF + 4 * c
                        a(f"    v_mfma_f32_16x16x32_bf16 v[{16+4*c}:{19+4*c}], v[112:115], v[{B}:{B+3}], v[{16+4*c}:{19+4*c}]")
                    if cl < NCL - 1:
                        rdB(cl + 1, c)
            if cl < NCL - 1:
                rdA(cl + 1, i)
    stamp(a, 2)
    a("""
    v_lshlrev_b32 v3, 4, v0
    s_lshl_b32 s37, s3, 13
    v_add_u32 v4, s37, v3
""")
    for t in range(8):
        a(f"    ds_write_b128 v4, v[{16+4*t}:{19+4*t}] offset:{1024*t}")
    a("""
    s_lshl_b32 s37, s36, 14          ; cw*16384
    s_lshl_b32 s38, s35, 12
    s_add_u32 s37, s37, s38
    v_add_u32 v4, s37, v3
    s_waitcnt lgkmcnt(0)
    s_barrier
""")
    for tt in range(4):
        for sw in range(2):
            b = 48 + 8 * tt + 4 * sw
            a(f"    ds_read_b128 v[{b}:{b+3}], v4 offset:{8192*sw+1024*tt}")
    a("""
    v_lshrrev_b32 v5, 1, v1
    v_lshlrev_b32 v5, 6, v5
    v_and_b32 v8, 1, v1
    v_lshlrev_b32 v8, 3, v8
    v_lshlrev_b32 v9, 4, v2
    v_add3_u32 v5, v5, v8, v9
    s_lshl_b32 s37, s35, 11
    v_add_u32 v5, s37, v5
""")
    for tt in range(4):
        b = 48 + 8 * tt
        a(f"    s_waitcnt lgkmcnt({6-2*tt})")
        for r in range(4):
            a(f"    v_add_f32 v{b+r}, v{b+r}, v{b+4+r}")
        a(f"    v_cvt_pk_bf16_f32 v{10+2*tt}, v{b}, v{b+1}")
        a(f"    v_cvt_pk_bf16_f32 v{11+2*tt}, v{b+2}, v{b+3}")
        a(f"    buffer_store_dwordx2 v[{10+2*tt}:{11+2*tt}], v5, s[28:31], 0 offen offset:{512*tt}")
    a("    s_branch K2_END")
    a.label("K2_AUX")
    a("""
    s_sub_u32 s16, s2, 832
    s_lshl_b32 s16, s16, 2
    s_add_u32 s16, s16, s3           ; unit 0..159
    s_waitcnt lgkmcnt(0)
""")
    srd(a, 32, 10, 11, 640 * 1280)
    srd(a, 36, 4, 5, 640 * 1280, WOP)
    srd(a, 40, 12, 13, 2048 * 1280)
    a("""
    s_lshl_b32 s30, s16, 2           ; k0 = 4*unit
    s_and_b32 s31, s30, 0xfffffff3
    s_and_b32 s50, s30, 4
    s_lshl_b32 s50, s50, 1
    s_or_b32 s31, s31, s50
    s_and_b32 s50, s30, 8
    s_lshr_b32 s50, s50, 1
    s_or_b32 s31, s31, s50           ; perm(k0)
    s_mul_i32 s30, s30, 1280
    s_mul_i32 s31, s31, 160
    s_movk_i32 s50, 820
    s_movk_i32 s51, 6554
    s_mov_b32 s52, 102400
""")
    for j in range(5):
        a(f"""
    v_add_u32 v20, {64*j}, v0
    v_mul_u32_u24 v21, s50, v20
    v_lshrrev_b32 v21, 16, v21       ; row
    v_mul_u32_u24 v22, 80, v21
    v_sub_u32 v22, v20, v22          ; c
    v_mul_u32_u24 v23, s51, v22
    v_lshrrev_b32 v23, 16, v23       ; slab
    v_mul_u32_u24 v24, 10, v23
    v_sub_u32 v24, v22, v24          ; cc
    v_mul_u32_u24 v25, 0x500, v21
    v_lshl_add_u32 v30, v22, 4, v25              ; src
    buffer_load_dwordx4 v[{64+4*j}:{67+4*j}], v30, s[32:35], s30 offen
    v_mul_u32_u24 v25, 160, v21
    v_lshl_add_u32 v25, v24, 4, v25
    v_mad_u32_u24 v{40+j}, v23, s52, v25         ; dst
""")
    a("""
    v_lshlrev_b32 v18, 4, v0
    s_lshl_b32 s53, s16, 14
""")
    for j in range(16):
        if j % 4 == 0 and j:
            a("    s_add_u32 s53, s53, 4096")
        a(f"    buffer_load_dwordx4 v[{96+4*(j%4)}:{99+4*(j%4)}], v18, s[40:43], s53 offen offset:{1024*(j%4)}")
    a("    s_waitcnt vmcnt(16)")
    for j in range(5):
        a(f"    buffer_store_dwordx4 v[{64+4*j}:{67+4*j}], v{40+j}, s[36:39], s31 offen")
    a("    s_branch K2_EXIT")
    a.label("K2_END")
    stamp_flush(a, 1, 3)
    a.label("K2_EXIT")
    a("    s_endpgm")


DESC = """
.amdhsa_kernel k2_kernel
  .amdhsa_next_free_vgpr 128
  .amdhsa_next_free_sgpr 102
  .amdhsa_accum_offset 128
  .amdhsa_group_segment_fixed_size 0
  .amdhsa_kernarg_size 96
  .amdhsa_user_sgpr_count 2
  .amdhsa_user_sgpr_kernarg_segment_ptr 1
  .amdhsa_system_sgpr_workgroup_id_x 1
.end_amdhsa_kernel
"""
```

```python
import re

TRANS = ("v_exp_f32", "v_log_f32", "v_rcp_f32", "v_rsq_f32", "v_sqrt_f32", "v_sin_f32", "v_cos_f32")


def _regs(tok):
    tok = tok.strip()
    tok = tok.lstrip("-")
    m = re.match(r"abs\((.*)\)$", tok)
    if m:
        tok = m.group(1)
    m = re.match(r"([vsa])\[(\d+):(\d+)\]$", tok)
    if m:
        return [(m.group(1), i) for i in range(int(m.group(2)), int(m.group(3)) + 1)]
    m = re.match(r"([vsa])(\d+)$", tok)
    if m:
        return [(m.group(1), int(m.group(2)))]
    if tok == "vcc":
        return [("s", 106), ("s", 107)]
    if tok == "vcc_lo":
        return [("s", 106)]
    if tok == "vcc_hi":
        return [("s", 107)]
    if tok == "exec":
        return [("s", 126), ("s", 127)]
    if tok == "exec_lo":
        return [("s", 126)]
    if tok == "exec_hi":
        return [("s", 127)]
    if tok == "m0":
        return [("s", 124)]
    return []


class Inst:
    def __init__(self, text):
        self.text = text
        t = text.split(";")[0].strip()
        self.label = t.endswith(":")
        self.defs, self.uses = set(), set()
        self.srcc = set()
        self.srcab = set()
        self.kind = "other"
        self.passes = 0
        self.nop = 0
        if self.label or not t or t.startswith("."):
            self.kind = "meta"
            self.op = ""
            return
        parts = t.split(None, 1)
        op = parts[0]
        self.op = op
        rest = parts[1] if len(parts) > 1 else ""
        ops = [o.strip() for o in rest.split(",")] if rest else []
        ops2 = []
        for o in ops:
            ops2.append(o.split()[0] if o else o)
        mods = rest
        R = [_regs(o) for o in ops2]
        if op == "s_nop":
            self.kind = "nop"
            self.nop = int(ops2[0], 0) + 1
        elif op.startswith("v_mfma"):
            self.kind = "mfma"
            self.passes = 8 if "32x32" in op else 4
            self.defs = set(R[0])
            self.srcab = set(R[1]) | set(R[2])
            self.srcc = set(R[3])
            self.uses = self.srcab | self.srcc
        elif op.startswith("v_"):
            self.kind = "valu"
            if op.startswith("v_cmp"):
                self.defs = set(R[0])
                for r in R[1:]:
                    self.uses |= set(r)
            elif op.startswith("v_permlane") and "swap" in op:
                self.defs = set(R[0]) | set(R[1])
                self.uses = set(R[0]) | set(R[1])
            elif op in ("v_add_co_u32", "v_sub_co_u32", "v_addc_co_u32", "v_subb_co_u32"):
                self.defs = set(R[0]) | set(R[1])
                for r in R[2:]:
                    self.uses |= set(r)
            else:
                self.defs = set(R[0])
                for r in R[1:]:
                    self.uses |= set(r)
                if op.startswith("v_fmac") or op.startswith("v_mac") or op.startswith("v_writelane"):
                    self.uses |= set(R[0])
                if op.startswith("v_cndmask") and len(R) < 4:
                    self.uses |= {("s", 106), ("s", 107)}
        elif op.startswith("ds_"):
            self.kind = "ds"
            if op.startswith("ds_read") or op.startswith("ds_bpermute") or op.startswith("ds_permute") or op.startswith("ds_swizzle"):
                self.defs = set(R[0])
                for r in R[1:]:
                    self.uses |= set(r)
            else:
                for r in R:
                    self.uses |= set(r)
        elif op.startswith("buffer_") or op.startswith("global_"):
            self.kind = "vmem"
            islds = re.search(r"\blds\b", mods) is not None or "_lds_" in op
            self.lds = islds
            if "load" in op and not islds:
                self.defs = set(R[0])
                for r in R[1:]:
                    self.uses |= set(r)
            else:
                for r in R:
                    self.uses |= set(r)
                if islds:
                    self.uses |= {("s", 124)}
            self.wide_store = ("store" in op) and ("x4" in op or "x3" in op)
            self.store_data = set(R[0]) if ("store" in op and op.startswith("buffer_")) else (set(R[1]) if "store" in op else set())
        elif op.startswith("s_"):
            self.kind = "salu"
            if op.startswith("s_cmp") or op.startswith("s_cbranch") or op in ("s_branch", "s_barrier", "s_waitcnt", "s_endpgm", "s_setprio", "s_sleep"):
                for r in R:
                    self.uses |= set(r)
            else:
                if R:
                    self.defs = set(R[0])
                for r in R[1:]:
                    self.uses |= set(r)
                if "saveexec" in op:
                    self.defs |= {("s", 126), ("s", 127)}
        self.trans = op in TRANS


def required_gap(p, c):
    need = 0
    vdefs = {r for r in p.defs if r[0] in "va"}
    sdefs = {r for r in p.defs if r[0] == "s"}
    if p.kind == "valu":
        if c.kind == "mfma" and vdefs & c.uses:
            need = max(need, 2)
        if sdefs:
            if c.kind == "vmem" and sdefs & c.uses:
                need = max(need, 5)
            if c.kind in ("valu", "mfma") and sdefs & c.uses:
                need = max(need, 4 if c.op.startswith(("v_readlane", "v_writelane")) else 2)
            if c.kind == "salu" and sdefs & c.uses:
                need = max(need, 2)
        if c.kind == "valu" and c.op.startswith(("v_readfirstlane", "v_readlane")) and vdefs & c.uses:
            need = max(need, 1)
        if p.trans and c.kind == "valu" and not c.trans and vdefs & c.uses:
            need = max(need, 1)
        if c.kind == "valu" and (c.op.startswith("v_permlane") or "dpp" in c.text or "row_" in c.text or "quad_perm" in c.text) and vdefs & c.uses:
            need = max(need, 2)
    if p.kind == "mfma":
        big = 12 if p.passes == 8 else 8
        if c.kind == "mfma":
            if vdefs & c.srcab:
                need = max(need, big)
            if vdefs & c.srcc:
                if not (c.srcc == vdefs and c.passes == p.passes):
                    need = max(need, 10 if p.passes == 8 else 6)
            if (vdefs & c.defs) and not (vdefs & c.srcc):
                need = max(need, big)
        elif c.kind in ("valu", "vmem", "ds"):
            if vdefs & (c.uses | c.defs):
                need = max(need, big)
            if c.kind == "valu" and (p.srcc & c.defs):
                need = max(need, 7 if p.passes == 8 else 3)
    if p.kind == "salu" and ("s", 124) in p.defs:
        if c.kind == "vmem" and getattr(c, "lds", False):
            need = max(need, 1)
    if p.kind == "vmem" and getattr(p, "wide_store", False):
        if c.kind in ("valu", "mfma", "vmem", "ds") and (p.store_data & c.defs):
            need = max(need, 2)
    return need


class Asm:
    def __init__(self):
        self.lines = []

    def __call__(self, text):
        for l in text.split("\n"):
            l = l.rstrip()
            if l.strip():
                self.lines.append(l)

    def label(self, name):
        self.lines.append(name + ":")

    def finalize(self, window=24):
        insts = [Inst(l) for l in self.lines]
        out = []

        def dist_states(seq, i_from):
            n = 0
            for k in range(i_from + 1, len(seq)):
                x = seq[k]
                if x.kind == "meta":
                    continue
                n += x.nop if x.kind == "nop" else 1
            return n

        for c in insts:
            if c.kind in ("meta", "nop"):
                out.append(c)
                continue
            need_extra = 0
            n = 0
            for k in range(len(out) - 1, -1, -1):
                p = out[k]
                if p.kind == "meta":
                    continue
                g = required_gap(p, c)
                if g > n:
                    need_extra = max(need_extra, g - n)
                n += p.nop if p.kind == "nop" else 1
                if n > window:
                    break
            while need_extra > 0:
                t = min(need_extra, 16)
                out.append(Inst("    s_nop %d" % (t - 1)))
                need_extra -= t
            out.append(c)
        labels = {x.text.split(":")[0].strip(): i for i, x in enumerate(out) if x.label}
        problems = []
        for i, x in enumerate(out):
            if x.kind == "salu" and (x.op.startswith("s_cbranch") or x.op == "s_branch"):
                tgt = x.text.split(";")[0].split()[-1]
                if tgt not in labels:
                    continue
                j = labels[tgt]
                pre = [y for y in out[max(0, i - window):i + 1] if y.kind != "meta"]
                post = [y for y in out[j:j + window] if y.kind != "meta"]
                for b, c in enumerate(post):
                    if c.kind == "nop":
                        continue
                    n = sum((y.nop if y.kind == "nop" else 1) for y in post[:b])
                    for a in range(len(pre) - 1, -1, -1):
                        p = pre[a]
                        g = required_gap(p, c)
                        if g > n:
                            problems.append((p.text, c.text, g, n))
                        n += p.nop if p.kind == "nop" else 1
        for pr in problems:
            print("HAZARD across branch:", pr)
        if problems:
            raise SystemExit("fix branch hazards")
        return "\n".join(x.text for x in out) + "\n"


STAMP = False
TS_OFF = 0x1800000


def stamp(a, idx):
    if STAMP:
        a(f"    s_memrealtime s[{80+2*idx}:{81+2*idx}]")
        a("    s_waitcnt lgkmcnt(0)")


def stamp_flush(a, kidx, nst):
    if not STAMP:
        return
    a(f"""
    s_memrealtime s[{80+2*nst}:{81+2*nst}]
    s_load_dwordx2 s[72:73], s[0:1], 88
    s_waitcnt vmcnt(0) lgkmcnt(0)
    s_add_u32 s72, s72, 0x{TS_OFF + kidx*0x200000:x}
    s_addc_u32 s73, s73, 0
    s_mov_b32 s74, 0x200000
    s_mov_b32 s75, 0x20000
    s_lshl_b32 s76, s2, 4
    s_add_u32 s76, s76, s3
    s_lshl_b32 s76, s76, 6
    v_mov_b32 v0, s76
    s_mov_b64 exec, 1
""")
    for i in range(nst + 1):
        a(f"    v_mov_b32 v1, s{80+2*i}")
        a(f"    buffer_store_dword v1, v0, s[72:75], 0 offen offset:{4*i}")
```

```python
from asmlib import Asm, stamp, stamp_flush

QH, KH, VT, OO, XR0, XR1, ZT = 0x0, 0x280000, 0x500000, 0x780000, 0xA00000, 0xC80000, 0xF00000
WOP = 0x1180000
import math, struct
QSCALE = struct.unpack('<I', struct.pack('<f', (20 ** -0.5) * math.log2(math.e)))[0]
REG = 0x280000
NST = 10
NSLOT = 5
import os
DBG = os.environ.get('K1DBG', 'pf')


def srd(a, d, lo, hi, size, add=0):
    if add:
        a(f"    s_add_u32 s{d}, s{lo}, 0x{add:x}")
        a(f"    s_addc_u32 s{d+1}, s{hi}, 0")
    else:
        a(f"    s_mov_b32 s{d}, s{lo}")
        a(f"    s_mov_b32 s{d+1}, s{hi}")
    a(f"    s_mov_b32 s{d+2}, 0x{size:x}")
    a(f"    s_mov_b32 s{d+3}, 0x20000")


class VQ:
    def __init__(self, a):
        self.a = a
        self.q = []

    def issue(self, tag, text):
        self.a(text)
        self.q.append(tag)

    def wait(self, tag):
        idx = max((i for i, t in enumerate(self.q) if t == tag), default=-1)
        if idx < 0:
            return
        n = len(self.q) - 1 - idx
        self.a(f"    s_waitcnt vmcnt({min(n, 63)})")
        if n <= 63:
            self.q = self.q[idx + 1:]


def gen_k1(a):
    a("""
.globl k1_kernel
.p2align 8
.type k1_kernel,@function
k1_kernel:
    s_cmp_ge_u32 s2, 240
    s_cbranch_scc1 K1_EXIT
    s_load_dwordx2 s[4:5], s[0:1], 48
    s_load_dwordx2 s[6:7], s[0:1], 56
    s_load_dwordx2 s[8:9], s[0:1], 88
    s_load_dwordx2 s[10:11], s[0:1], 8
    s_load_dwordx2 s[12:13], s[0:1], 16
    s_load_dwordx2 s[14:15], s[0:1], 24
    s_load_dwordx2 s[60:61], s[0:1], 32
    s_load_dwordx2 s[62:63], s[0:1], 0
    s_load_dwordx2 s[64:65], s[0:1], 64
    v_lshrrev_b32 v1, 6, v0
    v_and_b32 v0, 63, v0
    v_readfirstlane_b32 s3, v1
    s_and_b32 s16, s2, 7
    s_mul_i32 s16, s16, 30
    s_lshr_b32 s17, s2, 3
    s_add_u32 s16, s16, s17          ; L
    s_mul_i32 s17, s16, 1093
    s_lshr_b32 s17, s17, 16          ; sgroup
    s_mul_i32 s18, s17, 60
    s_sub_u32 s18, s16, s18          ; rem
    s_lshl_b32 s17, s17, 2
    s_and_b32 s16, s18, 3
    s_add_u32 s16, s16, s17          ; mt
    s_lshr_b32 s17, s18, 2           ; nt
    s_waitcnt lgkmcnt(0)
""")
    stamp(a, 0)
    a("""
    s_cmp_ge_u32 s3, 8
    s_cbranch_scc1 K1_PREP
    s_cmp_ge_u32 s3, 4
    s_cbranch_scc1 K1_HELPER
""")
    srd(a, 20, 4, 5, 2048 * 1280)
    srd(a, 24, 6, 7, 640 * 3840)
    a("""
    s_lshl_b32 s18, s2, 2
    s_add_u32 s18, s18, s3
    s_lshl_b32 s18, s18, 10
    v_lshlrev_b32 v1, 4, v0
    s_add_u32 s19, s18, 0xf0000
    s_add_u32 s28, s18, 0x1e0000
""")
    if 'pf' in DBG:
        a("""
    buffer_load_dwordx4 v[112:115], v1, s[20:23], s18 offen
    buffer_load_dwordx4 v[116:119], v1, s[24:27], s18 offen
    buffer_load_dwordx4 v[120:123], v1, s[20:23], s19 offen
    buffer_load_dwordx4 v[124:127], v1, s[24:27], s19 offen
    buffer_load_dwordx4 v[128:131], v1, s[20:23], s28 offen
    buffer_load_dwordx4 v[132:135], v1, s[24:27], s28 offen
""")
    if 'pfw' in DBG:
        a("    s_waitcnt vmcnt(0)")
        a("    s_barrier")
    if 'kv' in DBG:
        srd(a, 32, 10, 11, 2048 * 1280)
        srd(a, 36, 12, 13, 2048 * 1280)
        a("""
    buffer_load_dwordx4 v[136:139], v1, s[32:35], s18 offen
    buffer_load_dwordx4 v[140:143], v1, s[36:39], s18 offen
    buffer_load_dwordx4 v[144:147], v1, s[32:35], s19 offen
    buffer_load_dwordx4 v[148:151], v1, s[36:39], s19 offen
    buffer_load_dwordx4 v[152:155], v1, s[32:35], s28 offen
    buffer_load_dwordx4 v[156:159], v1, s[36:39], s28 offen
""")

    a("""
    s_lshr_b32 s18, s3, 1
    s_and_b32 s19, s3, 1
    v_and_b32 v1, 31, v0             ; l&31
    v_lshrrev_b32 v2, 5, v0          ; kh
    v_lshrrev_b32 v3, 1, v1
    v_and_b32 v3, 7, v3              ; f
    v_xor_b32 v3, v3, v2             ; kh ^ f
    v_lshlrev_b32 v3, 4, v3
    s_lshl_b32 s20, s18, 6
    v_add_u32 v4, s20, v1
    v_lshlrev_b32 v4, 7, v4          ; row*128
    v_add_u32 v4, v4, v3
    v_xor_b32 v5, 32, v4
    v_xor_b32 v6, 64, v4
    v_xor_b32 v7, 0x60, v4
    ; W addresses
    v_lshrrev_b32 v8, 4, v0          ; g
    v_lshrrev_b32 v9, 2, v0
    v_and_b32 v9, 3, v9              ; r
    v_and_b32 v10, 3, v0             ; c
    v_lshrrev_b32 v11, 1, v8
    v_lshlrev_b32 v11, 3, v11
    v_add_u32 v11, v11, v9           ; k_local
    v_lshlrev_b32 v11, 8, v11
    v_and_b32 v12, 1, v8
    v_lshlrev_b32 v12, 5, v12        ; 16*(g&1)*2
    v_lshlrev_b32 v10, 3, v10        ; 4c*2
    v_add3_u32 v11, v11, v12, v10
    v_add_u32 v11, 0x4000, v11
    s_lshl_b32 s20, s19, 1           ; seg j=0
    v_xor_b32 v12, s20, v9
    v_lshlrev_b32 v12, 6, v12
    v_add_u32 v8, v11, v12           ; W base j=0
    s_add_u32 s20, s20, 1
    v_xor_b32 v12, s20, v9
    v_lshlrev_b32 v12, 6, v12
    v_add_u32 v9, v11, v12           ; W base j=1
""")
    for i in range(64):
        a(f"    v_mov_b32 v{48+i}, 0")
    a("""
    v_mov_b32 v10, v4
    v_mov_b32 v11, v5
    v_mov_b32 v12, v6
    v_mov_b32 v13, v7
    v_mov_b32 v14, v8
    v_mov_b32 v15, v9
    s_mov_b32 s21, 0                 ; stage
    s_mov_b32 s22, 0
""")

    def rd_list(ks, st):
        b = 16 + 16 * st
        if 'noread' in DBG:
            return []
        r = [f"    ds_read_b128 v[{b}:{b+3}], v{10+ks}",
             f"    ds_read_b64_tr_b16 v[{b+8}:{b+9}], v14 offset:{ks*4096}",
             f"    ds_read_b64_tr_b16 v[{b+10}:{b+11}], v14 offset:{ks*4096+1024}",
             f"    ds_read_b64_tr_b16 v[{b+12}:{b+13}], v15 offset:{ks*4096}",
             f"    ds_read_b64_tr_b16 v[{b+14}:{b+15}], v15 offset:{ks*4096+1024}",
             f"    ds_read_b128 v[{b+4}:{b+7}], v{10+ks} offset:4096"]
        return r

    def step(st, vmode, rds):
        b = 16 + 16 * st
        n = 0
        rds = list(rds)
        for i in range(2):
            for j in range(2):
                acc = 48 + 16 * (2 * i + j)
                xf = f"v[{b+4*i}:{b+4*i+3}]"
                wf = f"v[{b+8+4*j}:{b+8+4*j+3}]"
                if 'nomfma' not in DBG:
                    if vmode:
                        a(f"    v_mfma_f32_32x32x16_bf16 v[{acc}:{acc+15}], {xf}, {wf}, v[{acc}:{acc+15}]")
                    else:
                        a(f"    v_mfma_f32_32x32x16_bf16 v[{acc}:{acc+15}], {wf}, {xf}, v[{acc}:{acc+15}]")
                for _ in range(2):
                    if rds:
                        a(rds.pop(0))

    def mainloop(tag, vmode):
        a("    s_barrier")
        for r in rd_list(0, 0):
            a(r)
        a.label(f"K1_LOOP_{tag}")
        a("    s_waitcnt lgkmcnt(0)")
        step(0, vmode, rd_list(1, 1))
        a("    s_waitcnt lgkmcnt(0)")
        step(1, vmode, rd_list(2, 0))
        a("    s_waitcnt lgkmcnt(0)")
        step(0, vmode, rd_list(3, 1))
        a(f"""
    s_add_u32 s21, s21, 1
    s_add_u32 s22, s22, 0x8000
    s_cmp_eq_u32 s22, 0x{NSLOT*0x8000:x}
    s_cselect_b32 s22, 0, s22
    v_add_u32 v10, s22, v4
    v_add_u32 v11, s22, v5
    v_add_u32 v12, s22, v6
    v_add_u32 v14, s22, v8
    v_add_u32 v15, s22, v9
    s_cmp_eq_u32 s21, {NST}
    s_waitcnt lgkmcnt(0)
    s_cbranch_scc1 K1_LAST_{tag}
    s_barrier
    v_add_u32 v13, s22, v7
""")
        step(1, vmode, rd_list(0, 0))
        a(f"    s_branch K1_LOOP_{tag}")
        a.label(f"K1_LAST_{tag}")
        step(1, vmode, [])

    mainloop("G", True)
    a(f"""
    s_mov_b32 s28, s8
    s_mov_b32 s29, s9
    s_mov_b32 s30, 0x{3*REG:x}
    s_mov_b32 s31, 0x20000
    s_cmp_ge_u32 s17, 5
    s_cselect_b32 s27, 1.0, 0x{QSCALE:08x}
    s_lshl_b32 s23, s19, 6
    v_add_u32 v3, s23, v1
    v_mul_u32_u24 v3, 272, v3
    s_lshl_b32 s24, s18, 7           ; wm*64*2
    v_add_u32 v3, s24, v3
    s_cmp_ge_u32 s17, 10
    s_cselect_b32 s25, 4, 3
    s_cselect_b32 s26, 8, 16
    v_lshlrev_b32 v4, s25, v2
    v_add_u32 v3, v3, v4             ; g even
    v_add_u32 v4, s26, v3            ; g odd
    s_barrier
""")
    n = 0
    for j in range(2):
        for i in range(2):
            for g in range(4):
                acc = 48 + 16 * (2 * i + j) + 4 * g
                d = 16 + 2 * (n % 8)
                n += 1
                for q in range(4):
                    a(f"    v_mul_f32 v{acc+q}, s27, v{acc+q}")
                a(f"    v_cvt_pk_bf16_f32 v{d}, v{acc}, v{acc+1}")
                a(f"    v_cvt_pk_bf16_f32 v{d+1}, v{acc+2}, v{acc+3}")
                a(f"    ds_write_b64 v{3+(g&1)}, v[{d}:{d+1}] offset:{j*32*272+i*64+(g>>1)*32}")
    a("""
    v_lshrrev_b32 v5, 4, v0
    v_and_b32 v6, 15, v0             ; chunk
    s_lshl_b32 s23, s3, 5
    v_add_u32 v5, s23, v5
    v_mul_u32_u24 v7, 272, v5
    v_lshl_add_u32 v7, v6, 4, v7
    s_lshl_b32 s23, s17, 7           ; nt*128
    v_add_u32 v5, s23, v5
    v_lshlrev_b32 v5, 12, v5         ; col*4096
    v_lshl_add_u32 v5, v6, 4, v5
    s_lshl_b32 s24, s16, 8           ; mt*128*2
    v_add_u32 v5, s24, v5
    s_waitcnt lgkmcnt(0)
    s_barrier
""")
    for t in range(8):
        a(f"    ds_read_b128 v[{48+4*t}:{51+4*t}], v7 offset:{t*4*272}")
    for t in range(8):
        a(f"    s_mov_b32 s23, {t*4*4096}")
        a(f"    s_waitcnt lgkmcnt({7-t})")
        a(f"    buffer_store_dwordx4 v[{48+4*t}:{51+4*t}], v5, s[28:31], s23 offen")
    a("    s_branch K1_END")

    a.label("K1_HELPER")
    srd(a, 20, 4, 5, 2048 * 1280)
    srd(a, 24, 6, 7, 640 * 3840)
    a("""
    s_sub_u32 s18, s3, 4             ; hw
    v_lshrrev_b32 v1, 3, v0          ; lane>>3
    v_and_b32 v2, 7, v0              ; slot
    v_lshrrev_b32 v3, 4, v0          ; lane>>4
    s_lshl_b32 s19, s16, 7
    s_lshl_b32 s28, s18, 5
    s_add_u32 s19, s19, s28
    v_add_u32 v4, s19, v1            ; row (j=0)
    v_mul_u32_u24 v4, 0x500, v4      ; *1280
    v_xor_b32 v5, v2, v3
    v_xor_b32 v6, 4, v5
    v_lshl_add_u32 v10, v5, 4, v4                 ; j=0
    v_lshl_add_u32 v11, v6, 4, v4
    v_add_u32 v11, 0x2400, v11                    ; j=1: +8*1280-1024
    v_add_u32 v12, 0x4800, v10                    ; j=2: +16*1280-2048
    v_add_u32 v13, 0x4800, v11                    ; j=3
    ; W
    s_lshl_b32 s28, s18, 4           ; hw*16
    v_add_u32 v4, s28, v3            ; krow j=0
    v_mul_u32_u24 v4, 0xf00, v4      ; *3840
    v_and_b32 v5, 15, v0
    v_lshlrev_b32 v6, 2, v3
    v_xor_b32 v5, v5, v6
    v_lshl_add_u32 v4, v5, 4, v4
    s_lshl_b32 s28, s17, 8           ; nt*256
    v_add_u32 v14, s28, v4                        ; j=0
    v_add_u32 v15, 0x3800, v14                    ; +4*3840-1024
    v_add_u32 v16, 0x7000, v14
    v_add_u32 v17, 0xa800, v14
    s_lshl_b32 s19, s18, 12          ; hw*4096
""")

    def dma(vq, st):
        slot = st % NSLOT
        if 'nodma' in DBG:
            return
        a(f"    s_add_u32 m0, s19, 0x{slot*0x8000:x}")
        a(f"    s_mov_b32 s29, {st*128}")
        for j in range(4):
            vq.issue(f"D{st}", f"    buffer_load_dwordx4 v{10+j}, s[20:23], s29 offen offset:{1024*j} lds")
        a(f"    s_add_u32 m0, s19, 0x{slot*0x8000+0x4000:x}")
        a(f"    s_mov_b32 s29, {st*245760}")
        for j in range(4):
            vq.issue(f"D{st}", f"    buffer_load_dwordx4 v{14+j}, s[24:27], s29 offen offset:{1024*j} lds")

    vq = VQ(a)
    if 'pfw' in DBG:
        a("    s_barrier")
    dma(vq, 0)
    dma(vq, 1)
    dma(vq, 2)
    sched = {0: [3, 4]}
    for i in range(1, 6):
        sched[i] = [i + 4]
    for s in range(NST):
        vq.wait(f"D{s}")
        a("    s_barrier")
        if s < 9:
            stamp(a, 1 + s)
        for st in sched.get(s, []):
            dma(vq, st)
    a("    s_branch K1_END")

    a.label("K1_PREP")
    if 'pfw' in DBG:
        a("    s_barrier")
    srd(a, 68, 60, 61, 640 * 4096)
    srd(a, 72, 62, 63, 2048 * 1280)
    a("""
    s_sub_u32 s18, s3, 8             ; pw
    v_lshlrev_b32 v18, 4, v0
    s_lshl_b32 s57, s2, 2
    s_add_u32 s57, s57, s18
    s_lshl_b32 s57, s57, 10          ; gid*1024
    s_add_u32 s58, s57, 0xf0000
    s_add_u32 s59, s57, 0x1e0000
    s_mul_i32 s28, s2, 3
    s_add_u32 s28, s28, s18
    s_cmp_eq_u32 s18, 3
    s_cbranch_scc1 K1_P_NONE
    s_cmp_ge_u32 s28, 640
    s_cbranch_scc1 K1_P_NONE
""")
    KR, VR, SK, W, KL, KHI, XL, XH, PK = 32, 52, 72, 76, 84, 88, 92, 110, 128

    def latepf():
        for j in range(3):
            a(f"    buffer_load_dwordx4 v[160:163], v18, s[68:71], s{57+j} offen")
            a(f"    buffer_load_dwordx4 v[164:167], v18, s[72:75], s{57+j} offen")

    srd(a, 32, 10, 11, 2048 * 1280)
    srd(a, 36, 12, 13, 2048 * 1280)
    srd(a, 40, 14, 15, 640 * 8)
    srd(a, 44, 8, 9, 2 * REG, XR0)
    a("""
    s_mul_i32 s30, s28, 6554
    s_lshr_b32 s30, s30, 16          ; sg
    s_mul_i32 s31, s30, 10
    s_sub_u32 s31, s28, s31          ; cg
    s_lshl_b32 s30, s30, 5           ; sg*32
    s_lshl_b32 s31, s31, 6           ; cg*64
    v_and_b32 v20, 31, v0            ; cp
    v_lshlrev_b32 v20, 1, v20
    v_add_u32 v20, s31, v20          ; ch
    v_lshrrev_b32 v21, 5, v0
    v_lshlrev_b32 v21, 4, v21
    v_add_u32 v21, s30, v21          ; s0
    v_mul_u32_u24 v22, 0x500, v21
    v_lshl_add_u32 v22, v20, 1, v22  ; vpos
    v_subrev_u32 v23, 0x1400, v22
    v_lshlrev_b32 v24, 3, v20
    v_lshlrev_b32 v25, 12, v20       ; ch*4096
    v_lshlrev_b32 v21, 1, v21
    v_sub_u32 v25, v25, v21
    v_add_u32 v25, 0xfe0, v25
    s_mov_b32 s50, 5120
    s_mov_b32 s51, 10240
    s_mov_b32 s52, 15360
    s_mov_b32 s53, 4096
    s_mov_b32 s54, 0x280000
    s_mov_b32 s55, 0x281000
    s_mov_b32 s56, 0xffff0000
""")
    so = ["0", "s50", "s51", "s52"]
    pl = [f"    buffer_load_dwordx4 v[{SK}:{SK+3}], v24, s[40:43], 0 offen"]
    for r in range(1, 4):
        pl.append(f"    buffer_load_dword v{KR+r}, v23, s[32:35], 0 offen offset:{1280*r}")
    for r in range(16):
        pl.append(f"    buffer_load_dword v{KR+4+r}, v22, s[32:35], {so[r>>2]} offen offset:{1280*(r&3)}")
        pl.append(f"    buffer_load_dword v{VR+1+r}, v22, s[36:39], {so[r>>2]} offen offset:{1280*(r&3)}")
    ops = []
    for c2 in range(2):
        for q in range(2):
            ops.append(f"    v_lshlrev_b32 v{W+4*c2+2*q}, 16, v{SK+2*c2+q}")
            ops.append(f"    v_and_b32 v{W+4*c2+2*q+1}, s56, v{SK+2*c2+q}")
    for r in range(1, 4):
        ops.append(f"    v_lshlrev_b32 v{KL+(r&3)}, 16, v{KR+r}")
        ops.append(f"    v_and_b32 v{KHI+(r&3)}, s56, v{KR+r}")
    for r in range(1, 17):
        rr = r + 3
        ops.append(f"    v_lshlrev_b32 v{KL+(rr&3)}, 16, v{KR+rr}")
        ops.append(f"    v_and_b32 v{KHI+(rr&3)}, s56, v{KR+rr}")
        for (kb, xb, wb) in ((KL, XL, W), (KHI, XH, W + 4)):
            ops.append(f"    v_mul_f32 v{xb+r}, v{kb+(rr&3)}, v{wb}")
            ops.append(f"    v_fmac_f32 v{xb+r}, v{kb+((rr-1)&3)}, v{wb+1}")
            ops.append(f"    v_fmac_f32 v{xb+r}, v{kb+((rr-2)&3)}, v{wb+2}")
            ops.append(f"    v_fmac_f32 v{xb+r}, v{kb+((rr-3)&3)}, v{wb+3}")
        ops.append(f"    v_lshlrev_b32 v26, 16, v{VR+r}")
        ops.append(f"    v_and_b32 v27, s56, v{VR+r}")
        ops.append(f"    v_mul_f32 v{XL+r}, v{XL+r}, v26")
        ops.append(f"    v_mul_f32 v{XH+r}, v{XH+r}, v27")
    so2 = {(0, 0): "0", (1, 0): "s53", (0, 1): "s54", (1, 1): "s55"}
    for c2, xb in enumerate((XL, XH)):
        for e in range(1, 2):
            p = PK + 16 * c2 + 8 * e
            for q in range(8):
                t0 = 14 + e - 2 * q
                ops.append(f"    v_cvt_pk_bf16_f32 v{p+q}, v{xb+t0+1}, v{xb+t0}")
            for hf in range(2):
                ops.append(f"    buffer_store_dwordx4 v[{p+4*hf}:{p+4*hf+3}], v25, s[44:47], {so2[(c2,e)]} offen offset:{16*hf}")
    PL = int(os.environ.get('K1PL', 6))
    LPF = int(os.environ.get('K1LPF', 99))
    NB = NST + 2
    PC = int(os.environ.get('K1PC', 9))
    nchunk = NB - PC
    per = (len(ops) + nchunk - 1) // nchunk
    for s_ in range(NB):
        a("    s_barrier")
        if s_ == PL:
            for t in pl:
                a(t)
        if s_ == PC:
            a("    s_waitcnt vmcnt(0)")
        if s_ >= PC:
            for o in ops[(s_ - PC) * per:(s_ - PC + 1) * per]:
                a(o)
    a("    s_branch K1_END")

    a.label("K1_P_NONE")
    for s_ in range(NST):
        a("    s_barrier")
        if s_ == LPF:
            latepf()
    a.label("K1_END")
    stamp_flush(a, 0, 10)
    a.label("K1_EXIT")
    a("    s_endpgm")


K1_DESC = """
.amdhsa_kernel k1_kernel
  .amdhsa_next_free_vgpr 168
  .amdhsa_next_free_sgpr 102
  .amdhsa_accum_offset 168
  .amdhsa_group_segment_fixed_size 0
  .amdhsa_kernarg_size 96
  .amdhsa_user_sgpr_count 2
  .amdhsa_user_sgpr_kernarg_segment_ptr 1
  .amdhsa_system_sgpr_workgroup_id_x 1
.end_amdhsa_kernel
"""
```

```python
from asmlib import Asm, stamp, stamp_flush
from k1 import QH, KH, VT, OO, XR0, XR1, ZT, WOP, REG, srd
import math

LDS = 39680
LAUNCH = f"; @launch kernel=k2_kernel grid=(872,1,1) block=(256,1,1) lds={LDS}"
KT, VTL, ONES, QT = 0, 16640, 32320, 33280
HCS, XC0, XCS = 4480, 8960, 4576
CH_L = 8960 + 2 * 4576


def gen_k2(a):
    a("""
.globl k2_kernel
.p2align 8
.type k2_kernel,@function
k2_kernel:
    s_cmp_ge_u32 s2, 872
    s_cbranch_scc1 K2_EXIT
    s_load_dwordx2 s[4:5], s[0:1], 88
    s_load_dwordx2 s[6:7], s[0:1], 32
    s_load_dwordx2 s[8:9], s[0:1], 40
    s_load_dwordx2 s[10:11], s[0:1], 64
    s_load_dwordx2 s[12:13], s[0:1], 0
    v_lshrrev_b32 v1, 6, v0
    v_and_b32 v0, 63, v0
    v_readfirstlane_b32 s3, v1
""")
    stamp(a, 0)
    a("""
    s_cmp_ge_u32 s2, 832
    s_cbranch_scc1 K2_AUX
    s_cmp_ge_u32 s2, 512
    s_cbranch_scc1 K2_CONV_B
    s_setprio 2
    s_mov_b32 s17, s2                ; idx 0..511
    s_and_b32 s16, s17, 31
    s_lshr_b32 s17, s17, 5           ; qc
    s_lshl_b32 s18, s17, 7           ; q0
    s_sub_u32 s19, s18, 256
    s_waitcnt lgkmcnt(0)
""")
    srd(a, 20, 4, 5, 3 * REG)
    srd(a, 32, 4, 5, REG, OO)
    a("    s_mul_i32 s36, s16, 81920        ; h*20*4096")

    a(f"""
    v_lshl_add_u32 v3, v0, 3, s19
    v_max_i32 v3, 0, v3
    v_lshlrev_b32 v3, 1, v3
    v_lshl_add_u32 v4, v0, 3, s18    ; q0 + 8*lane
    v_lshlrev_b32 v4, 1, v4
    s_mul_i32 s37, s3, {5*4096}
    s_add_u32 s36, s36, s37          ; (h*20 + 5w)*4096
    s_mul_i32 s38, s3, {5*832}
    s_mul_i32 s39, s3, {5*784}
    s_mul_i32 s40, s3, {5*320}
    s_mov_b32 exec_hi, 0xffff
""")
    for r in range(5):
        a(f"    s_add_u32 m0, s38, {KT + r*832}")
        a(f"    s_add_u32 s41, s36, 0x{640*4096 + r*4096:x}")
        a("    buffer_load_dwordx4 v3, s[20:23], s41 offen lds")
    a("    s_mov_b64 exec, 0xffff")
    for r in range(5):
        a(f"    s_add_u32 m0, s40, {QT + r*320}")
        a(f"    s_add_u32 s41, s36, 0x{r*4096:x}")
        a("    buffer_load_dwordx4 v4, s[20:23], s41 offen lds")
    a("    s_mov_b32 exec_lo, -1")
    a("    s_mov_b32 exec_hi, 0xffff")
    for r in range(5):
        a(f"    s_add_u32 m0, s39, {VTL + r*784}")
        a(f"    s_add_u32 s41, s36, 0x{1280*4096 + r*4096:x}")
        a("    buffer_load_dwordx4 v3, s[20:23], s41 offen lds")
    a("    s_mov_b64 exec, -1")
    QF, KF, SB, OA, VF = 16, 24, 48, 96, 112
    a(f"""
    v_mov_b32 v8, 0x3f803f80
    v_mov_b32 v9, v8
    v_mov_b32 v10, v8
    v_mov_b32 v11, v8
    v_min_u32 v3, 55, v0
    v_lshlrev_b32 v3, 4, v3
    ds_write_b128 v3, v[8:11] offset:{ONES}
    v_and_b32 v1, 31, v0             ; q / key / d
    v_lshrrev_b32 v2, 5, v0
    s_lshl_b32 s37, s3, 5            ; 32w
    s_add_u32 s38, s18, s37          ; qw
    v_mov_b32 v{QF+6}, 0
    v_mov_b32 v{QF+7}, 0
    v_mov_b32 v{KF+6}, 0
    v_mov_b32 v{KF+7}, 0
    v_mov_b32 v{KF+14}, 0
    v_mov_b32 v{KF+15}, 0
    v_mov_b32 v{KF+22}, 0
    v_mov_b32 v{KF+23}, 0
    v_lshrrev_b32 v3, 2, v0
    v_and_b32 v3, 3, v3              ; r
    v_and_b32 v4, 3, v0              ; c
    v_lshlrev_b32 v4, 3, v4          ; 4c*2
    v_and_b32 v5, 16, v0             ; 16*(g&1)
    v_lshl_add_u32 v4, v5, 1, v4
    s_lshl_b32 s39, s3, 6            ; 32w*2
    v_add_u32 v4, s39, v4
    v_lshl_add_u32 v5, v2, 3, v3     ; 8kh + r
    v_mul_u32_u24 v6, 832, v5
    v_add_u32 v6, v6, v4
    v_mul_u32_u24 v7, 832, v3
    v_add_u32 v7, v7, v4
    v_add_u32 v7, {16*832}, v7
    v_mul_u32_u24 v12, 320, v5
    v_add_u32 v12, v12, v4
    v_add_u32 v12, {QT}, v12
    v_mul_u32_u24 v13, 320, v3
    v_add_u32 v13, v13, v4
    v_add_u32 v13, {QT+16*320}, v13
    v_mul_u32_u24 v8, 784, v1
    v_add_u32 v8, {VTL}, v8
    v_mov_b32 v9, {ONES}
    v_mov_b32 v10, {ONES+128}
    v_cmp_le_u32 vcc, 28, v1
    v_cndmask_b32 v9, v9, v10, vcc
    v_cmp_le_u32 vcc, 20, v1
    v_cndmask_b32 v8, v8, v9, vcc
    v_lshlrev_b32 v9, 4, v2          ; 8hh*2
    v_add3_u32 v8, v8, v9, s39       ; vV
    v_lshlrev_b32 v9, 2, v2
    v_sub_u32 v9, v1, v9
""")
    for r in range(16):
        a(f"    v_cmp_le_i32 s[{40+2*r}:{41+2*r}], {8*(r>>2)+(r&3)}, v9")
    for r in range(16):
        a(f"    v_mov_b32 v{OA+r}, 0")
    a("""
    v_mov_b32 v10, 0xff800000
    v_mov_b32 v11, 0xf149f2ca
    s_lshr_b32 s39, s38, 5
    s_sub_u32 s39, 8, s39
    s_waitcnt vmcnt(0) lgkmcnt(0)
    s_barrier
""")
    stamp(a, 1)

    def kreads(g):
        for j in range(3):
            kb = 3 * g + j
            b = KF + 8 * j
            a(f"    ds_read_b64_tr_b16 v[{b}:{b+1}], v6 offset:{kb*64}")
            a(f"    ds_read_b64_tr_b16 v[{b+2}:{b+3}], v6 offset:{kb*64+3328}")
            a(f"    ds_read_b64_tr_b16 v[{b+4}:{b+5}], v7 offset:{kb*64}")

    def vreads(kb):
        b = VF + 8 * (kb & 1)
        a(f"    ds_read_b128 v[{b}:{b+3}], v8 offset:{kb*64}")
        a(f"    ds_read_b128 v[{b+4}:{b+7}], v8 offset:{kb*64+32}")

    a(f"""
    ds_read_b64_tr_b16 v[{QF}:{QF+1}], v12
    ds_read_b64_tr_b16 v[{QF+2}:{QF+3}], v12 offset:1280
    ds_read_b64_tr_b16 v[{QF+4}:{QF+5}], v13
""")
    kreads(0)
    a(f"""
    v_cmp_eq_u32 vcc, 0, v2
    s_waitcnt lgkmcnt(9)
    v_cndmask_b32 v{QF+4}, 0, v{QF+4}, vcc
    v_cndmask_b32 v{QF+5}, 0, v{QF+5}, vcc
""")
    for g in range(3):
        for j in range(3):
            a(f"    s_waitcnt lgkmcnt({6-3*j})")
            b = KF + 8 * j
            sb = SB + 16 * j
            a(f"    v_mfma_f32_32x32x16_bf16 v[{sb}:{sb+15}], v[{b}:{b+3}], v[{QF}:{QF+3}], 0")
            a(f"    v_mfma_f32_32x32x16_bf16 v[{sb}:{sb+15}], v[{b+4}:{b+7}], v[{QF+4}:{QF+7}], v[{sb}:{sb+15}]")
        vreads(3 * g)
        vreads(3 * g + 1)
        if g < 2 or True:
            a(f"    s_cmp_le_i32 s39, {3*g}")
            a(f"    s_cbranch_scc1 K2A_NOFIX{g}")
            a("    s_nop 7")
            a("    s_nop 7")
            for j in range(3):
                kb = 3 * g + j
                if kb == 8:
                    continue
                if j:
                    a(f"    s_cmp_le_i32 s39, {kb}")
                    a(f"    s_cbranch_scc1 K2A_NOFIX{g}")
                for r in range(16):
                    a(f"    v_mov_b32 v{SB+16*j+r}, v10")
            a.label(f"K2A_NOFIX{g}")
            a("    s_nop 7")
            a("    s_nop 3")
        if g == 0:
            for r in range(16):
                a(f"    v_cndmask_b32 v{SB+r}, v{SB+r}, v10, s[{40+2*r}:{41+2*r}]")
        if g == 2:
            for r in range(16):
                a(f"    v_cndmask_b32 v{SB+32+r}, v10, v{SB+32+r}, s[{40+2*r}:{41+2*r}]")
        a(f"    v_max3_f32 v12, v{SB}, v{SB+1}, v11")
        a(f"    v_max3_f32 v13, v{SB+2}, v{SB+3}, v{SB+4}")
        i = 5
        tog = 0
        while i < 47:
            d = 12 + tog
            a(f"    v_max3_f32 v{d}, v{d}, v{SB+i}, v{SB+i+1}")
            i += 2
            tog ^= 1
        a(f"    v_max3_f32 v12, v12, v13, v{SB+47}")
        a("""
    v_mov_b32 v13, v12
    v_permlane32_swap_b32 v12, v13
    v_max_f32 v12, v12, v13
""")
        if g > 0:
            a("    v_sub_f32 v14, v11, v12")
            a("    v_exp_f32 v14, v14")
        a("    v_mov_b32 v11, v12")
        if g > 0:
            for r in range(13):
                a(f"    v_mul_f32 v{OA+r}, v{OA+r}, v14")
        for j in range(3):
            kb = 3 * g + j
            sb = SB + 16 * j
            for r in range(16):
                a(f"    v_sub_f32 v{sb+r}, v{sb+r}, v11")
            for r in range(16):
                a(f"    v_exp_f32 v{sb+r}, v{sb+r}")
            for q in range(8):
                a(f"    v_cvt_pk_bf16_f32 v{sb+q}, v{sb+2*q}, v{sb+2*q+1}")
            if j == 0:
                a("    s_waitcnt lgkmcnt(2)")
            else:
                a("    s_waitcnt lgkmcnt(2)" if j == 1 else ("    s_waitcnt lgkmcnt(9)" if g < 2 else "    s_waitcnt lgkmcnt(0)"))
            b = VF + 8 * (kb & 1)
            a(f"    v_mfma_f32_32x32x16_bf16 v[{OA}:{OA+15}], v[{b}:{b+3}], v[{sb}:{sb+3}], v[{OA}:{OA+15}]")
            a(f"    v_mfma_f32_32x32x16_bf16 v[{OA}:{OA+15}], v[{b+4}:{b+7}], v[{sb+4}:{sb+7}], v[{OA}:{OA+15}]")
            if j == 0:
                vreads(kb + 2)
            if j == 1 and g < 2:
                kreads(g + 1)
    stamp(a, 2)
    a(f"""
    v_add_u32 v3, s38, v1
    v_lshrrev_b32 v4, 4, v3
    v_mul_u32_u24 v4, 0x5000, v4     ; (s>>4)*20480
    v_and_b32 v3, 15, v3
    v_lshl_add_u32 v3, v3, 4, v4     ; + (s&15)*16
    s_mul_i32 s39, s16, 20
    v_lshlrev_b32 v4, 2, v2
    v_add_u32 v4, s39, v4            ; k0 = h*20 + 4hh
""")
    for g in range(3):
        a(f"""
    v_add_u32 v5, {8*g}, v4
    v_lshrrev_b32 v6, 3, v5
    v_lshlrev_b32 v6, 8, v6          ; (k>>3)*256 == (k>>5)*1024 + ((k>>3)&3)*256
    v_and_b32 v5, 7, v5
    v_lshl_add_u32 v5, v5, 1, v6
    v_add_u32 v{12+g}, v3, v5
""")
    a(f"""
    v_cmp_eq_u32 vcc, 0, v2
    v_mov_b32 v5, 0x7fffffff
    v_cndmask_b32 v14, v5, v14, vcc
    v_rcp_f32 v11, v{OA+12}
""")
    for r in range(12):
        a(f"    v_mul_f32 v{OA+r}, v{OA+r}, v11")
    for g in range(3):
        a(f"    v_cvt_pk_bf16_f32 v{16+2*g}, v{OA+4*g}, v{OA+1+4*g}")
        a(f"    v_cvt_pk_bf16_f32 v{17+2*g}, v{OA+2+4*g}, v{OA+3+4*g}")
        a(f"    buffer_store_dwordx2 v[{16+2*g}:{17+2*g}], v{12+g}, s[32:35], 0 offen sc1")
    a("    s_branch K2_END")

    a.label("K2_CONV_B")
    a(f"""
    s_sub_u32 s16, s2, 512
    s_lshl_b32 s16, s16, 1
    s_lshr_b32 s36, s3, 1            ; cw
    s_add_u32 s16, s16, s36          ; ch
    s_and_b32 s35, s3, 1             ; hw
    s_mul_i32 s34, s36, {CH_L}
    s_lshl_b32 s17, s16, 12          ; ch*4096
    s_lshr_b32 s18, s16, 1
    s_lshl_b32 s18, s18, 2
    s_waitcnt lgkmcnt(0)
    s_load_dword s19, s[8:9], s18
    s_add_u32 s20, s6, s17
    s_addc_u32 s21, s7, 0
    s_mov_b32 s22, 0x1000
    s_mov_b32 s23, 0x20000
    s_add_u32 s37, s17, 0x{XR1:x}
    s_add_u32 s24, s4, s37
    s_addc_u32 s25, s5, 0
    s_cmp_eq_u32 s35, 0
    s_cselect_b32 s33, 2, 0
    s_lshl_b32 s26, s33, 1
    s_add_u32 s26, s26, 0x1000
    s_mov_b32 s27, 0x20000
    s_add_u32 s37, s17, 0x{ZT:x}
    s_add_u32 s28, s4, s37
    s_addc_u32 s29, s5, 0
    s_mov_b32 s30, 0x1000
    s_mov_b32 s31, 0x20000
    s_mul_i32 s37, s35, {HCS}
    s_add_u32 s37, s37, s34
    s_mov_b32 m0, s37
    s_sub_u32 s38, s35, 16
    v_add_u32 v2, s38, v0
    v_lshlrev_b32 v2, 2, v2
    buffer_load_dword v2, s[20:23], 0 offen lds
    s_add_u32 m0, s37, 256
    s_lshl_b32 s38, s35, 2
    s_add_u32 s38, s38, 192
    v_lshlrev_b32 v3, 4, v0
    v_add_u32 v2, s38, v3
    buffer_load_dwordx4 v2, s[20:23], 0 offen lds
    buffer_load_dwordx4 v2, s[20:23], 0 offen offset:1024 lds
    buffer_load_dwordx4 v2, s[20:23], 0 offen offset:2048 lds
    buffer_load_dwordx4 v2, s[20:23], 0 offen offset:3072 lds
    s_mul_i32 s37, s35, {XCS}
    s_add_u32 s37, s37, s34
    s_add_u32 m0, s37, {XC0}
    v_add_u32 v4, 0x2000, v3
    buffer_load_dwordx4 v3, s[24:27], s33 offen lds
    buffer_load_dwordx4 v3, s[24:27], s33 offen offset:1024 lds
    buffer_load_dwordx4 v3, s[24:27], s33 offen offset:2048 lds
    buffer_load_dwordx4 v3, s[24:27], s33 offen offset:3072 lds
    s_add_u32 m0, s37, {XC0+4096}
    s_mov_b64 exec, 0x0fffffff
    buffer_load_dwordx4 v4, s[24:27], 0 offen lds
    s_mov_b64 exec, -1
    v_and_b32 v1, 15, v0             ; m / n
    v_lshrrev_b32 v2, 4, v0
    v_add_u32 v4, 1, v1
    v_and_b32 v5, 1, v4              ; c2
    v_lshrrev_b32 v4, 1, v4
    v_lshlrev_b32 v4, 3, v4          ; 4*((m+1)>>1)*2
    v_lshl_add_u32 v4, v2, 4, v4
    v_mul_u32_u24 v5, {HCS}, v5
    s_lshl_b32 s37, s35, 8           ; 4 classes * 64
    s_add_u32 s37, s37, s34
    v_add3_u32 v6, v4, v5, s37       ; A addr
    v_and_b32 v4, 1, v1
    v_mul_u32_u24 v4, {XCS}, v4
    v_lshrrev_b32 v5, 1, v1
    v_lshlrev_b32 v5, 6, v5
    v_sub_u32 v4, v4, v5
    v_lshlrev_b32 v5, 4, v2
    v_add3_u32 v7, v4, v5, s37
    v_add_u32 v7, {XC0+448}, v7      ; B addr
    ; D fragment
    v_lshlrev_b32 v4, 2, v2
    v_add_u32 v4, v4, v1
    v_sub_u32 v4, 15, v4             ; t = 15 - m - 4kq
    s_waitcnt lgkmcnt(0)
    s_lshr_b32 s38, s19, 16
    s_and_b32 s39, s19, 0xffff
    s_bitcmp1_b32 s16, 0
    s_cselect_b32 s38, s38, s39
    s_cmp_eq_u32 s35, 0
    s_cselect_b32 s38, s38, 0
    v_mov_b32 v5, s38
""")
    for q in range(4):
        a(f"    v_cmp_eq_u32 vcc, {q}, v4")
        a(f"    v_cndmask_b32 v{112+q}, 0, v5, vcc")
    for r in range(32):
        a(f"    v_mov_b32 v{16+r}, 0")
    a(f"""
    v_mov_b32 v8, s34
    s_waitcnt vmcnt(0)
    s_cmp_lg_u32 s35, 0
    s_cbranch_scc1 K2C_NOZ
    ds_write_b16 v8, v16 offset:{XC0+4094}
    s_waitcnt lgkmcnt(0)
K2C_NOZ:
    s_barrier
""")
    stamp(a, 1)
    AF, BF = 48, 80

    class LQ:
        def __init__(self):
            self.q = []

        def issue(self, tag, text):
            a(text)
            self.q.append(tag)

        def wait(self, tags):
            idx = max((i for i, t in enumerate(self.q) if t in tags), default=-1)
            if idx < 0:
                return
            n = len(self.q) - 1 - idx
            a(f"    s_waitcnt lgkmcnt({min(n, 15)})")
            if n <= 15:
                self.q = self.q[idx + 1:]

    lq = LQ()

    def rdA(cl, i):
        b = AF + 4 * i
        lq.issue(("A", cl, i), f"    ds_read_b64 v[{b}:{b+1}], v6 offset:{512*i+64*cl}")
        lq.issue(("A", cl, i), f"    ds_read_b64 v[{b+2}:{b+3}], v6 offset:{512*i+64*cl+8}")

    def rdB(cl, c):
        b = BF + 4 * c
        lq.issue(("B", cl, c), f"    ds_read_b128 v[{b}:{b+3}], v7 offset:{512*(7-c)+64*cl}")

    def mm(i, c):
        t = i + c
        A = AF + 4 * i
        B = BF + 4 * c
        a(f"    v_mfma_f32_16x16x32_bf16 v[{16+4*t}:{19+4*t}], v[{A}:{A+3}], v[{B}:{B+3}], v[{16+4*t}:{19+4*t}]")

    NCL = 4
    for k in range(8):
        rdA(0, 7 - k)
        rdB(0, k)
    for cl in range(NCL):
        for i in range(7, -1, -1):
            lq.wait([("A", cl, i), ("B", cl, 7 - i)])
            if cl == NCL - 1 and i == 0:
                a("    s_barrier")
            for c in range(8 - i):
                mm(i, c)
                if i == 0:
                    if cl == 0:
                        B = BF + 4 * c
                        a(f"    v_mfma_f32_16x16x32_bf16 v[{16+4*c}:{19+4*c}], v[112:115], v[{B}:{B+3}], v[{16+4*c}:{19+4*c}]")
                    if cl < NCL - 1:
                        rdB(cl + 1, c)
            if cl < NCL - 1:
                rdA(cl + 1, i)
    stamp(a, 2)
    a("""
    v_lshlrev_b32 v3, 4, v0
    s_lshl_b32 s37, s3, 13
    v_add_u32 v4, s37, v3
""")
    for t in range(8):
        a(f"    ds_write_b128 v4, v[{16+4*t}:{19+4*t}] offset:{1024*t}")
    a("""
    s_lshl_b32 s37, s36, 14          ; cw*16384
    s_lshl_b32 s38, s35, 12
    s_add_u32 s37, s37, s38
    v_add_u32 v4, s37, v3
    s_waitcnt lgkmcnt(0)
    s_barrier
""")
    for tt in range(4):
        for sw in range(2):
            b = 48 + 8 * tt + 4 * sw
            a(f"    ds_read_b128 v[{b}:{b+3}], v4 offset:{8192*sw+1024*tt}")
    a("""
    v_lshrrev_b32 v5, 1, v1
    v_lshlrev_b32 v5, 6, v5
    v_and_b32 v8, 1, v1
    v_lshlrev_b32 v8, 3, v8
    v_lshlrev_b32 v9, 4, v2
    v_add3_u32 v5, v5, v8, v9
    s_lshl_b32 s37, s35, 11
    v_add_u32 v5, s37, v5
""")
    for tt in range(4):
        b = 48 + 8 * tt
        a(f"    s_waitcnt lgkmcnt({6-2*tt})")
        for r in range(4):
            a(f"    v_add_f32 v{b+r}, v{b+r}, v{b+4+r}")
        a(f"    v_cvt_pk_bf16_f32 v{10+2*tt}, v{b}, v{b+1}")
        a(f"    v_cvt_pk_bf16_f32 v{11+2*tt}, v{b+2}, v{b+3}")
        a(f"    buffer_store_dwordx2 v[{10+2*tt}:{11+2*tt}], v5, s[28:31], 0 offen offset:{512*tt} sc1")
    a("    s_branch K2_END")
    a.label("K2_AUX")
    a("""
    s_sub_u32 s16, s2, 832
    s_lshl_b32 s16, s16, 2
    s_add_u32 s16, s16, s3           ; unit 0..159
    s_waitcnt lgkmcnt(0)
""")
    srd(a, 32, 10, 11, 640 * 1280)
    srd(a, 36, 4, 5, 640 * 1280, WOP)
    srd(a, 40, 12, 13, 2048 * 1280)
    a("""
    s_lshl_b32 s30, s16, 2           ; k0 = 4*unit
    s_and_b32 s31, s30, 0xfffffff3
    s_and_b32 s50, s30, 4
    s_lshl_b32 s50, s50, 1
    s_or_b32 s31, s31, s50
    s_and_b32 s50, s30, 8
    s_lshr_b32 s50, s50, 1
    s_or_b32 s31, s31, s50           ; perm(k0)
    s_mul_i32 s30, s30, 1280
    s_mul_i32 s31, s31, 160
    s_movk_i32 s50, 820
    s_movk_i32 s51, 6554
    s_mov_b32 s52, 102400
""")
    for j in range(5):
        a(f"""
    v_add_u32 v20, {64*j}, v0
    v_mul_u32_u24 v21, s50, v20
    v_lshrrev_b32 v21, 16, v21       ; row
    v_mul_u32_u24 v22, 80, v21
    v_sub_u32 v22, v20, v22          ; c
    v_mul_u32_u24 v23, s51, v22
    v_lshrrev_b32 v23, 16, v23       ; slab
    v_mul_u32_u24 v24, 10, v23
    v_sub_u32 v24, v22, v24          ; cc
    v_mul_u32_u24 v25, 0x500, v21
    v_lshl_add_u32 v30, v22, 4, v25              ; src
    buffer_load_dwordx4 v[{64+4*j}:{67+4*j}], v30, s[32:35], s30 offen
    v_mul_u32_u24 v25, 160, v21
    v_lshl_add_u32 v25, v24, 4, v25
    v_mad_u32_u24 v{40+j}, v23, s52, v25         ; dst
""")
    a("""
    v_lshlrev_b32 v18, 4, v0
    s_lshl_b32 s53, s16, 14
""")
    for j in range(16):
        if j % 4 == 0 and j:
            a("    s_add_u32 s53, s53, 4096")
        a(f"    buffer_load_dwordx4 v[{96+4*(j%4)}:{99+4*(j%4)}], v18, s[40:43], s53 offen offset:{1024*(j%4)}")
    a("    s_waitcnt vmcnt(16)")
    for j in range(5):
        a(f"    buffer_store_dwordx4 v[{64+4*j}:{67+4*j}], v{40+j}, s[36:39], s31 offen sc1")
    a("    s_branch K2_EXIT")
    a.label("K2_END")
    stamp_flush(a, 1, 3)
    a.label("K2_EXIT")
    a("    s_endpgm")


DESC = """
.amdhsa_kernel k2_kernel
  .amdhsa_next_free_vgpr 128
  .amdhsa_next_free_sgpr 102
  .amdhsa_accum_offset 128
  .amdhsa_group_segment_fixed_size 0
  .amdhsa_kernarg_size 96
  .amdhsa_user_sgpr_count 2
  .amdhsa_user_sgpr_kernarg_segment_ptr 1
  .amdhsa_system_sgpr_workgroup_id_x 1
.end_amdhsa_kernel
"""
```
